```python
import torch

def _softmax(x, axis=-1):
    return torch.softmax(x, dim=axis)
def _gelu(x):
    return torch.nn.functional.gelu(x, approximate="tanh")
def _silu(x):
    return torch.nn.functional.silu(x)
def _sigmoid(x):
    return torch.sigmoid(x)
def _layernorm(x, axis=-1, eps=1e-5):
    m = x.mean(dim=axis, keepdim=True)
    v = x.var(dim=axis, keepdim=True, unbiased=False)
    return (x - m) / torch.sqrt(v + eps)
def _scatter_add(tgt, idx, src, axis=0):
    return tgt.clone().index_add_(axis, idx, src)
def _segment_sum(src, seg, n):
    out = torch.zeros((n,) + src.shape[1:], dtype=src.dtype)
    return out.index_add_(0, seg, src)
def _pad(x, pw):
    flat = tuple(v for pair in reversed(pw) for v in pair)
    return torch.nn.functional.pad(x, flat)

kernel_name = 'standalone__self_sup_conv_stem_hubert__speech'

def setup_inputs():

    _w = (lambda a: (lambda t: t.to(torch.bfloat16) if t.is_floating_point() else t)(torch.as_tensor(a)))
    B, T, D, K = 2, 16000, 256, 31
    scale = (1.0 / (K * D)) ** 0.5
    return {
        "x": _w((lambda *s: torch.randn(*s, dtype=torch.bfloat16) * 0.05)(B, T, D)),
        "w": _w((lambda *s: torch.randn(*s, dtype=torch.bfloat16) * 0.05)(K, D, D) * scale),
        "b": _w((lambda *s: torch.randn(*s, dtype=torch.bfloat16) * 0.05)(D) * 0.1),
        "gamma": _w(torch.ones((D,), dtype=float)),
        "beta": _w(torch.zeros((D,), dtype=float)),
    }

def reference(x, w, b, gamma, beta):
    B, T, D = x.shape
    K = w.shape[0]
    s = 2
    L = (T - K) // s + 1
    y = torch.einsum('blc,cd->bld', x[:, 0 : s * L : s, :], w[0])
    for i in range(1, K):
        y = y + torch.einsum('blc,cd->bld', x[:, i : i + s * L : s, :], w[i])
    y = y + b[None, None, :]
    mu = y.mean(1, keepdims=True)
    var = ((y - mu) ** 2).mean(1, keepdims=True)
    yn = (y - mu) / torch.sqrt(var + 1e-5)
    yn = yn * gamma[None, None, :] + beta[None, None, :]
    return _gelu(yn)
```

```python
import sys, struct
def f2u(x): return struct.unpack('<I', struct.pack('<f', x))[0]

NAME = "standalone__self_sup_conv_stem_hubert__speech"
HDR = """; Kernarg layout for this problem (64 bytes, ptrs only, base s[0:1]):
"""

class Opt:
    stamp = False
    loader = 0
    nodma = False
    nobar = False
    name = NAME

L = 7985
XBYTES = 2*16000*256*2
WBYTES = 31*256*256*2
OBYTES = 2*L*256*2
XBUF = 20480
XBASE = 65536
NXB = 3
LDS_BYTES = XBASE + NXB*XBUF

ACC = 0
FR = 64
WF = 188
vAlo, vAhi, vBlo, vBhi, vWrd, vWg = 200, 201, 202, 203, 204, 205
vXg = 206
vLane, vI, vG, vT0, vT1, vT2, vT3 = 211, 212, 213, 214, 215, 216, 217
NV = 224
sX, sW, sO, sWS, sDB, sB, sGA, sBE = 4, 8, 12, 16, 20, 24, 28, 32
sWave, sGrp, sMt, sL0, sH = 36, 37, 38, 39, 40
sWoff, sX0, sX1, sWm0, sXm0 = 41, 42, 43, 44, 45
sBufA, sBufB, sBufC = 46, 47, 48
sT0, sT1, sT2, sT3 = 49, 50, 51, 52
sMask = 56
sTS = 88

def F(u): return f"v[{FR+4*u}:{FR+4*u+3}]"
def A(s): return f"v[{ACC+4*s}:{ACC+4*s+3}]"
def Wf(k): return f"v[{WF+4*k}:{WF+4*k+3}]"
def srd(r): return f"s[{r}:{r+3}]"

def gen(o):
    out = []
    e = out.append
    nthreads = 512 if o.loader else 256
    e(HDR + f"; @launch grid=(256,1,1) block=({nthreads},1,1) lds={LDS_BYTES}")
    e('.amdgcn_target "amdgcn-amd-amdhsa--gfx950"')
    e(".text")
    e(f".globl {o.name}_kernel")
    e(".p2align 8")
    e(f".type {o.name}_kernel,@function")
    e(f"{o.name}_kernel:")
    e("s_cmp_ge_u32 s2, 256")
    e("s_cbranch_scc1 L_end")
    def stamp(k):
        if o.stamp:
            e(f"s_memtime s[{sTS+2*k}:{sTS+2*k+1}]")
    if o.stamp:
        e(f"s_memrealtime s[{sTS+10}:{sTS+11}]")
    stamp(0)
    e(f"s_load_dwordx2 s[{sX}:{sX+1}], s[0:1], 0")
    e(f"s_load_dwordx2 s[{sW}:{sW+1}], s[0:1], 8")
    e(f"s_load_dwordx2 s[{sB}:{sB+1}], s[0:1], 16")
    e(f"s_load_dwordx2 s[{sGA}:{sGA+1}], s[0:1], 24")
    e(f"s_load_dwordx2 s[{sBE}:{sBE+1}], s[0:1], 32")
    e(f"s_load_dwordx2 s[{sO}:{sO+1}], s[0:1], 40")
    e(f"s_load_dwordx2 s[{sDB}:{sDB+1}], s[0:1], 48")
    e(f"s_load_dwordx2 s[{sWS}:{sWS+1}], s[0:1], 56")
    e(f"v_lshrrev_b32 v{vT0}, 6, v0")
    e(f"v_and_b32 v{vLane}, 63, v0")
    e(f"v_readfirstlane_b32 s{sWave}, v{vT0}")
    e(f"s_and_b32 s{sGrp}, s2, 7")
    e(f"s_lshr_b32 s{sMt}, s2, 3")
    e(f"s_lshl_b32 s{sL0}, s{sMt}, 8")
    for r, n in ((sX, XBYTES), (sW, WBYTES), (sO, OBYTES), (sWS, 1 << 20), (sDB, 256), (sB, 512), (sGA, 512), (sBE, 512)):
        e(f"s_mov_b32 s{r+2}, {n}")
        e(f"s_mov_b32 s{r+3}, 0x00020000")
    if o.loader:
        e(f"s_and_b32 s{sT3}, s{sWave}, 4")
        e(f"s_and_b32 s{sWave}, s{sWave}, 3")
    e(f"v_and_b32 v{vI}, 15, v{vLane}")
    e(f"v_lshrrev_b32 v{vG}, 4, v{vLane}")
    e(f"v_lshrrev_b32 v{vT0}, 3, v{vLane}")
    e(f"s_lshl_b32 s{sT0}, s{sWave}, 3")
    e(f"v_add_u32 v{vT0}, s{sT0}, v{vT0}")
    e(f"v_bfe_u32 v{vT1}, v{vT0}, 1, 1")
    e(f"v_bfe_u32 v{vT2}, v{vT0}, 3, 1")
    e(f"v_lshl_or_b32 v{vT1}, v{vT2}, 1, v{vT1}")
    e(f"v_lshlrev_b32 v{vT1}, 1, v{vT1}")
    e(f"v_and_b32 v{vT2}, 7, v{vLane}")
    e(f"v_xor_b32 v{vT1}, v{vT1}, v{vT2}")
    e(f"v_lshlrev_b32 v{vT1}, 4, v{vT1}")
    e(f"v_lshl_add_u32 v{vWg}, v{vT0}, 9, v{vT1}")
    e(f"s_and_b32 s{sT0}, s{sGrp}, 3")
    e(f"s_lshl_b32 s{sT0}, s{sT0}, 7")
    e(f"v_add_u32 v{vWg}, s{sT0}, v{vWg}")
    e(f"s_lshr_b32 s{sT0}, s{sGrp}, 2")
    e(f"s_mul_i32 s{sT0}, s{sT0}, 16000")
    e(f"s_lshl_b32 s{sT1}, s{sL0}, 1")
    e(f"s_add_u32 s{sT0}, s{sT0}, s{sT1}")
    e(f"s_lshl_b32 s{sT0}, s{sT0}, 9")
    e(f"s_lshl_b32 s{sT1}, s{sWave}, 4")
    e(f"s_movk_i32 s{sT2}, 3856")
    for k in range(5):
        e(f"v_lshrrev_b32 v{vT0}, 2, v{vLane}")
        e(f"v_add_u32 v{vT0}, s{sT1}, v{vT0}")
        if k: e(f"v_add_u32 v{vT0}, {64*k}, v{vT0}")
        e(f"v_mul_u32_u24 v{vT1}, s{sT2}, v{vT0}")
        e(f"v_lshrrev_b32 v{vT1}, 16, v{vT1}")
        e(f"v_mul_u32_u24 v{vT2}, 17, v{vT1}")
        e(f"v_sub_u32 v{vT2}, v{vT0}, v{vT2}")
        e(f"v_lshl_add_u32 v{vT1}, v{vT2}, 4, v{vT1}")
        e(f"v_bfe_u32 v{vT2}, v{vT2}, 2, 1")
        e(f"v_lshlrev_b32 v{vT2}, 1, v{vT2}")
        e(f"v_and_b32 v{vT3}, 3, v{vLane}")
        e(f"v_xor_b32 v{vT2}, v{vT2}, v{vT3}")
        e(f"v_lshlrev_b32 v{vT2}, 4, v{vT2}")
        e(f"v_lshl_add_u32 v{vT1}, v{vT1}, 10, v{vT2}")
        e(f"v_add_u32 v{vXg+k}, s{sT0}, v{vT1}")
        if k == 4:
            e(f"v_cmp_gt_u32 vcc, 272, v{vT0}")
            e(f"v_mov_b32 v{vT1}, 0x40000000")
            e("s_nop 0")
            e(f"v_cndmask_b32 v{vXg+k}, v{vT1}, v{vXg+k}, vcc")
    e(f"s_lshl_b32 s{sWm0}, s{sWave}, 10")
    e(f"s_add_u32 s{sXm0}, s{sWm0}, {XBASE}")
    e(f"s_mov_b32 s{sBufA}, 0")
    e(f"s_mov_b32 s{sBufB}, {XBUF}")
    e(f"s_mov_b32 s{sBufC}, {2*XBUF}")
    e(f"s_mov_b32 s{sWoff}, 0")
    e(f"s_mov_b32 s{sX0}, 0")
    e(f"s_mov_b32 s{sX1}, 512")
    e(f"s_mov_b32 s{sH}, 0")
    e("s_waitcnt lgkmcnt(0)")
    for r in (sX, sW, sO, sWS, sDB, sB, sGA, sBE):
        e(f"s_and_b32 s{r+1}, s{r+1}, 0xffff")

    vm = []
    def wdma(tap, adv, tag):
        r = [f"s_add_u32 m0, s{sWm0}, {tap*4096}", "@gap",
             f"buffer_load_dwordx4 v{vWg}, {srd(sW)}, s{sWoff} offen lds",
             f"s_add_u32 s{sWoff}, s{sWoff}, {adv & 0xffffffff}"]
        return r, tag
    def xdma(k, sbuf, soff, tag):
        r = [f"s_add_u32 s{sT0}, s{sXm0}, s{sbuf}", f"s_add_u32 m0, s{sT0}, {k*4096}", "@gap",
             f"buffer_load_dwordx4 v{vXg+k}, {srd(sX)}, s{soff} offen lds"]
        return r, tag
    def emit_plain(r):
        for x in r: e("s_nop 0" if x == "@gap" else x)

    def prologue_dma():
        for k in range(5):
            r, t = xdma(k, sBufA, sX0, ("x", 0)); emit_plain(r); vm.append(t)
        for tap in range(4):
            r, t = wdma(tap, 262144, ("w", 0, tap)); emit_plain(r); vm.append(t)
        for k in range(5):
            r, t = xdma(k, sBufB, sX1, ("x", 1)); emit_plain(r); vm.append(t)
        for tap in range(4, 13):
            r, t = wdma(tap, 262144, ("w", 0, tap)); emit_plain(r); vm.append(t)
        e(f"s_mov_b32 s{sX0}, 64")
        e(f"s_mov_b32 s{sX1}, {512+64}")

    def dma_sched(c, j):
        par = c & 1; nt = 16 - par; res = []
        ntn = 16 - ((c+1) & 1)
        def adv_next(tap, nt_, par_):
            if tap < nt_-1: return 262144
            if par_ == 0: return 131072 - 15*262144
            return -131072 + 16384 - 14*262144
        if j <= 2:
            tap = 13 + j
            if tap < nt: res.append(wdma(tap, adv_next(tap, nt, par), ("w", c, tap)))
        if 3 <= j <= 14:
            tap = j - 3
            res.append(wdma(tap, 262144, ("w", c+1, tap)))
        if j == nt-1:
            res.append(wdma(12, 262144, ("w", c+1, 12)))
        if 3 <= j <= 7:
            res.append(xdma(j-3, sBufC, sX1 if par else sX0, ("x", c+2)))
        return res
    def barrier_needs(c, j):
        par = c & 1; nt = 16 - par
        if j in (3, 7, 11):
            q = (j+1)//4
            return [("w", c, t) for t in range(4*q, min(4*q+4, nt))]
        if j == nt-1:
            return [("w", c+1, t) for t in range(4)] + [("x", c+2)]
        return None
    def sim_counts():
        log = [("x",0)]*5 + [("w",0,t) for t in range(4)] + [("x",1)]*5 + [("w",0,t) for t in range(4,13)]
        cnt = {}
        for c in range(6):
            for j in range(16-(c&1)):
                need = barrier_needs(c, j)
                if need is not None:
                    last = max(i for i, t in enumerate(log) if t in need)
                    for t in need: assert t in log
                    n = len(log) - 1 - last
                    key = (c & 1, j)
                    cnt[key] = min(cnt.get(key, 99), n)
                for r, t in dma_sched(c, j): log.append(t)
        return cnt
    vmc = sim_counts()

    def chunk_head_scalar(par):
        return []

    if o.loader:
        e(f"s_cmp_lg_u32 s{sT3}, 0")
        e("s_cbranch_scc1 L_loader")
    else:
        prologue_dma()
    e(f"v_bfe_u32 v{vT0}, v{vI}, 2, 1")
    e(f"v_lshlrev_b32 v{vT0}, 1, v{vT0}")
    e(f"v_xor_b32 v{vT0}, v{vT0}, v{vG}")
    e(f"v_lshlrev_b32 v{vT0}, 4, v{vT0}")
    e(f"v_lshl_add_u32 v{vBlo}, v{vI}, 6, v{vT0}")
    e(f"v_add_u32 v{vBlo}, {XBASE}, v{vBlo}")
    e(f"v_add_u32 v{vT1}, 1, v{vI}")
    e(f"v_bfe_u32 v{vT0}, v{vT1}, 2, 1")
    e(f"v_lshlrev_b32 v{vT0}, 1, v{vT0}")
    e(f"v_xor_b32 v{vT0}, v{vT0}, v{vG}")
    e(f"v_lshlrev_b32 v{vT0}, 4, v{vT0}")
    e(f"v_lshl_add_u32 v{vBhi}, v{vT1}, 6, v{vT0}")
    e(f"v_add_u32 v{vBhi}, {XBASE}, v{vBhi}")
    e(f"v_mov_b32 v{vAlo}, v{vBlo}")
    e(f"v_mov_b32 v{vAhi}, v{vBhi}")
    e(f"v_lshrrev_b32 v{vT0}, 2, v{vI}")
    e(f"v_lshl_add_u32 v{vT1}, v{vG}, 3, v{vT0}")
    e(f"v_bfe_u32 v{vT0}, v{vT0}, 1, 1")
    e(f"v_and_b32 v{vT2}, 1, v{vG}")
    e(f"v_lshl_or_b32 v{vT0}, v{vT2}, 1, v{vT0}")
    e(f"v_xor_b32 v{vT0}, s{sWave}, v{vT0}")
    e(f"v_lshlrev_b32 v{vT0}, 5, v{vT0}")
    e(f"v_lshl_add_u32 v{vT0}, v{vT1}, 7, v{vT0}")
    e(f"v_and_b32 v{vT2}, 3, v{vLane}")
    e(f"v_lshl_add_u32 v{vWrd}, v{vT2}, 3, v{vT0}")
    for r in range(64): e(f"v_mov_b32 v{ACC+r}, 0")
    if not o.loader: e("s_waitcnt vmcnt(9)")
    e("s_barrier")
    stamp(1)
    def aread(u, addr): return f"ds_read_b128 {F(u)}, v{addr} offset:{(u & 15)*1088}"
    def wread(tap, buf):
        return [f"ds_read_b64_tr_b16 v[{WF+4*buf}:{WF+4*buf+1}], v{vWrd} offset:{tap*4096}",
                f"ds_read_b64_tr_b16 v[{WF+4*buf+2}:{WF+4*buf+3}], v{vWrd} offset:{tap*4096+512}"]
    def wbuf(par, j): return 2 if (par == 1 and j == 14) else (j & 1)
    for x in wread(0, 0): e(x)
    for u in range(14): e(aread(u, vAlo))
    e(".p2align 3")
    e("L_loop:")
    for par in (0, 1):
        nt = 16 - par
        for j in range(nt):
            e(f"; ---- chunk par={par} step {j}")
            e("s_waitcnt lgkmcnt(0)")
            need = barrier_needs(par, j)
            if need is not None and not o.nobar:
                if not o.loader and not o.nodma: e(f"s_waitcnt vmcnt({vmc[(par, j)]})")
                e("s_barrier")
            fill = [[] for _ in range(16)]
            if j == 0:
                fill[0] += [aread(14, vAlo), aread(15, vAlo)]
                fill[1] += wread(1, wbuf(par, 1))
                fill[2] += [aread(16, vAhi), f"v_add_u32 v{vAlo}, s{sBufB}, v{vBlo}"]
                fill[13] += ["s_waitcnt lgkmcnt(3)"]
            else:
                fill[0] += wread(j+1, wbuf(par, j+1)) if j+1 < nt else wread(0, 0)
                if j <= 14:
                    fill[1] += [aread(16+j, vAhi), aread(j-1, vAlo)]
            pos = 3
            if j == nt-1:
                fill[2] += [f"v_add_u32 v{vAhi}, s{sBufB}, v{vBhi}"]
            if not o.loader and not o.nodma:
                if par == 1 and j == 3:
                    fill[2] += [f"s_cmp_eq_u32 s{sH}, 7", f"s_cselect_b32 s{sW+2}, 0, s{sW+2}"]
                if par == 0 and j == 2:
                    fill[2] += [f"s_cmp_eq_u32 s{sH}, 7", f"s_cselect_b32 s{sX+2}, 0, s{sX+2}"]
                for r, t in dma_sched(par, j):
                    for x in r:
                        if x == "@gap": pos += 1
                        else: fill[pos].append(x)
                    pos += 1
            if j == nt-1:
                fill[12] += [f"s_mov_b32 s{sT1}, s{sBufA}", f"s_mov_b32 s{sBufA}, s{sBufB}"]
                fill[13] += [f"s_mov_b32 s{sBufB}, s{sBufC}", f"s_mov_b32 s{sBufC}, s{sT1}"]
                if par == 1:
                    fill[11] += [f"s_add_u32 s{sX0}, s{sX0}, 64", f"s_add_u32 s{sX1}, s{sX1}, 64"]
                    fill[14] += [f"s_add_u32 s{sH}, s{sH}, 1", f"s_cmp_lt_u32 s{sH}, 8"]
            for s in range(16):
                e(f"v_mfma_f32_16x16x32_bf16 {A(s)}, {Wf(wbuf(par, j))}, {F(j+s)}, {A(s)}")
                for x in fill[s]: e(x)
    e("s_cbranch_scc1 L_loop")
    stamp(2)
    T = FR
    e("s_waitcnt vmcnt(0) lgkmcnt(0)")
    e(f"s_and_b32 s{sT0}, s{sGrp}, 3")
    e(f"s_lshl_b32 s{sT0}, s{sT0}, 7")
    e(f"s_lshl_b32 s{sT1}, s{sWave}, 5")
    e(f"s_add_u32 s{sT0}, s{sT0}, s{sT1}")
    e(f"v_lshlrev_b32 v{vT0}, 3, v{vG}")
    e(f"v_add_u32 v{vT0}, s{sT0}, v{vT0}")
    PB, PG, PE = 188, 190, 192
    e(f"buffer_load_dwordx2 v[{PB}:{PB+1}], v{vT0}, {srd(sB)}, 0 offen")
    e(f"buffer_load_dwordx2 v[{PG}:{PG+1}], v{vT0}, {srd(sGA)}, 0 offen")
    e(f"buffer_load_dwordx2 v[{PE}:{PE+1}], v{vT0}, {srd(sBE)}, 0 offen")
    vOut = 200
    e(f"s_lshr_b32 s{sT1}, s{sGrp}, 2")
    e(f"s_mul_i32 s{sT1}, s{sT1}, {L}")
    e(f"s_add_u32 s{sT1}, s{sT1}, s{sL0}")
    e(f"s_lshl_b32 s{sT1}, s{sT1}, 9")
    e(f"v_lshl_add_u32 v{vOut}, v{vI}, 13, v{vT0}")
    e(f"v_add_u32 v{vOut}, s{sT1}, v{vOut}")
    vNv = 201
    e(f"s_sub_u32 s{sT1}, {L}, s{sL0}")
    e(f"v_lshlrev_b32 v{vNv}, 4, v{vI}")
    e(f"v_sub_u32 v{vNv}, s{sT1}, v{vNv}")
    for s in range(16):
        e(f"v_cmp_lt_i32 s[{sMask+2*s}:{sMask+2*s+1}], {s}, v{vNv}")
    e(f"s_mov_b32 s{sT2}, {f2u(1.0/256)}")
    e(f"s_cmp_eq_u32 s{sMt}, 31")
    e(f"s_cselect_b32 s{sT2}, {f2u(1.0/49)}, s{sT2}")
    e("s_cbranch_scc0 L_nomask1")
    for s in range(16):
        for r in range(4):
            e(f"v_cndmask_b32 v{4*s+r}, 0, v{4*s+r}, s[{sMask+2*s}:{sMask+2*s+1}]")
    e("L_nomask1:")
    def P(r): return f"v[{r}:{r+1}]"
    for k in range(8):
        for h in (0, 2):
            e(f"v_pk_add_f32 {P(T+4*k+h)}, {P(8*k+h)}, {P(8*k+4+h)}")
    for n in (4, 2, 1):
        for k in range(n):
            for h in (0, 2):
                e(f"v_pk_add_f32 {P(T+4*k+h)}, {P(T+4*k+h)}, {P(T+4*(k+n)+h)}")
    def dppred(base):
        e("s_nop 1")
        for sh in (8, 4, 2, 1):
            for r in range(4):
                e(f"v_add_f32_dpp v{base+r}, v{base+r}, v{base+r} row_ror:{sh} row_mask:0xf bank_mask:0xf")
    dppred(T)
    ML = T+4
    for r in range(4): e(f"v_mul_f32 v{ML+r}, s{sT2}, v{T+r}")
    for s in range(16):
        for h in (0, 2):
            e(f"v_pk_add_f32 {P(4*s+h)}, {P(4*s+h)}, {P(ML+h)} neg_lo:[0,1] neg_hi:[0,1]")
    e(f"s_cmp_eq_u32 s{sMt}, 31")
    e("s_cbranch_scc0 L_nomask2")
    for s in range(16):
        for r in range(4):
            e(f"v_cndmask_b32 v{4*s+r}, 0, v{4*s+r}, s[{sMask+2*s}:{sMask+2*s+1}]")
    e("L_nomask2:")
    Q = T+8
    for s in range(16):
        for h in (0, 2):
            q = Q + 4*(s & 3) + h
            if s < 4: e(f"v_pk_mul_f32 {P(q)}, {P(4*s+h)}, {P(4*s+h)}")
            else: e(f"v_pk_fma_f32 {P(q)}, {P(4*s+h)}, {P(4*s+h)}, {P(q)}")
    for h in (0, 2):
        e(f"v_pk_add_f32 {P(Q+h)}, {P(Q+h)}, {P(Q+4+h)}")
        e(f"v_pk_add_f32 {P(Q+8+h)}, {P(Q+8+h)}, {P(Q+12+h)}")
    for h in (0, 2):
        e(f"v_pk_add_f32 {P(Q+h)}, {P(Q+h)}, {P(Q+8+h)}")
    dppred(Q)
    PUB = T+24
    e(f"v_cmp_eq_u32 vcc, 0, v{vI}")
    e(f"s_lshl_b32 s{sT0}, s{sGrp}, 2")
    e(f"s_add_u32 s{sT0}, s{sT0}, s{sWave}")
    e(f"s_lshl_b32 s{sT0}, s{sT0}, 12")
    for r in range(4): e(f"v_cndmask_b32 v{PUB+r}, v{Q+r}, v{T+r}, vcc")
    e(f"s_lshl_b32 s{sT1}, s{sMt}, 7")
    e(f"s_add_u32 s{sT1}, s{sT1}, s{sT0}")
    e(f"v_lshlrev_b32 v{vT1}, 5, v{vG}")
    e(f"v_lshl_add_u32 v{vT2}, v{vI}, 4, v{vT1}")
    e(f"v_cmp_gt_u32 vcc, 2, v{vI}")
    e(f"s_and_saveexec_b64 s[{sT2+2}:{sT2+3}], vcc") if False else None
    e("s_mov_b64 exec, vcc") if False else None
    e("s_nop 1")
    e("s_and_b64 exec, exec, vcc")
    e(f"buffer_store_dwordx4 v[{PUB}:{PUB+3}], v{vT2}, {srd(sWS)}, s{sT1} offen sc1")
    e("s_mov_b64 exec, -1")
    e(f"v_lshl_add_u32 v{vT2}, v{vI}, 7, v{vT1}")
    e("s_waitcnt vmcnt(0)")
    e("s_barrier")
    stamp(3)
    e(f"s_cmp_lg_u32 s{sWave}, 0")
    e("s_cbranch_scc1 L_polled")
    e(f"s_lshl_b32 s{sT1}, s{sGrp}, 5")
    e(f"v_mov_b32 v{vT3}, 1")
    e(f"v_mov_b32 v{vT1}, 0")
    e("s_mov_b64 exec, 1")
    e(f"buffer_atomic_add v{vT3}, v{vT1}, {srd(sDB)}, s{sT1} offen sc1")
    e(f"s_mov_b32 s{sT3}, 0")
    e("L_poll:")
    e(f"buffer_load_dword v{vT3}, v{vT1}, {srd(sDB)}, s{sT1} offen sc1")
    e(f"s_add_u32 s{sT3}, s{sT3}, 1")
    e("s_waitcnt vmcnt(0)")
    e(f"v_readfirstlane_b32 s{sT2}, v{vT3}")
    e(f"s_cmp_ge_u32 s{sT3}, 0x40000")
    e("s_cbranch_scc1 L_pollx")
    e(f"s_cmp_lt_u32 s{sT2}, 32")
    e("s_cbranch_scc1 L_poll")
    e("L_pollx:")
    e("s_mov_b64 exec, -1")
    e("L_polled:")
    e("s_barrier")
    RA = T+32
    e(f"buffer_load_dwordx4 v[{RA}:{RA+3}], v{vT2}, {srd(sWS)}, s{sT0} offen sc1")
    e(f"buffer_load_dwordx4 v[{RA+8}:{RA+11}], v{vT2}, {srd(sWS)}, s{sT0} offen offset:2048 sc1")
    e(f"buffer_load_dwordx4 v[{RA+4}:{RA+7}], v{vT2}, {srd(sWS)}, s{sT0} offen offset:16 sc1")
    e(f"buffer_load_dwordx4 v[{RA+12}:{RA+15}], v{vT2}, {srd(sWS)}, s{sT0} offen offset:2064 sc1")
    UB, UG, UE = T+48, T+52, T+56
    for src, dst in ((PB, UB), (PG, UG), (PE, UE)):
        for h in range(2):
            e(f"v_lshlrev_b32 v{dst+2*h}, 16, v{src+h}")
            e(f"v_and_b32 v{dst+2*h+1}, 0xffff0000, v{src+h}")
    vNB, vRB = T+60, T+61
    e(f"v_cmp_eq_u32 vcc, 15, v{vI}")
    e(f"v_mov_b32 v{vNB}, {f2u(256.0)}")
    e(f"v_mov_b32 v{vRB}, {f2u(1.0/256)}")
    e(f"v_mov_b32 v{vT1}, {f2u(49.0)}")
    e(f"v_mov_b32 v{vT3}, {f2u(1.0/49)}")
    e(f"v_cndmask_b32 v{vNB}, v{vNB}, v{vT1}, vcc")
    e(f"v_cndmask_b32 v{vRB}, v{vRB}, v{vT3}, vcc")
    MU = T+64
    e("s_waitcnt vmcnt(2)")
    for r in range(4): e(f"v_add_f32 v{MU+r}, v{RA+r}, v{RA+8+r}")
    dppred(MU)
    e(f"s_mov_b32 s{sT1}, {f2u(1.0/L)}")
    e(f"s_mov_b32 s{sT2}, {f2u(1.0/256)}")
    e(f"s_mov_b32 s{sT3}, {f2u(256.0)}")
    for r in range(4): e(f"v_mul_f32 v{MU+r}, s{sT1}, v{MU+r}")
    for r in range(4):
        e(f"v_fma_f32 v{RA+r}, v{RA+r}, s{sT2}, -v{MU+r}")
        e(f"v_fma_f32 v{RA+8+r}, v{RA+8+r}, v{vRB}, -v{MU+r}")
    for r in range(4):
        e(f"v_mul_f32 v{RA+r}, v{RA+r}, v{RA+r}")
        e(f"v_mul_f32 v{RA+8+r}, v{RA+8+r}, v{RA+8+r}")
    e("s_waitcnt vmcnt(0)")
    for r in range(4):
        e(f"v_fma_f32 v{RA+4+r}, v{RA+r}, s{sT3}, v{RA+4+r}")
        e(f"v_fma_f32 v{RA+12+r}, v{RA+8+r}, v{vNB}, v{RA+12+r}")
    VAR = T+68
    for r in range(4): e(f"v_add_f32 v{VAR+r}, v{RA+4+r}, v{RA+12+r}")
    dppred(VAR)
    e(f"v_mov_b32 v{vT1}, {f2u(1e-5)}")
    for r in range(4): e(f"v_fma_f32 v{VAR+r}, v{VAR+r}, s{sT1}, v{vT1}")
    for r in range(4): e(f"v_rsq_f32 v{VAR+r}, v{VAR+r}")
    SC, SH = T+72, T+76
    for r in range(4): e(f"v_add_f32 v{MU+r}, v{MU+r}, v{UB+r}")
    for r in range(4): e(f"v_add_f32 v{ML+r}, v{ML+r}, v{UB+r}")
    for r in range(4): e(f"v_mul_f32 v{SC+r}, v{VAR+r}, v{UG+r}")
    for r in range(4): e(f"v_sub_f32 v{ML+r}, v{ML+r}, v{MU+r}")
    for r in range(4): e(f"v_fma_f32 v{SH+r}, v{ML+r}, v{SC+r}, v{UE+r}")
    c1 = -2.0*1.4426950408889634*0.7978845608028654
    c2 = c1*0.044715
    C1, C2 = T+80, T+82
    for h in range(2):
        e(f"v_mov_b32 v{C1+h}, {f2u(c1)}")
        e(f"v_mov_b32 v{C2+h}, {f2u(c2)}")
    stamp(4)
    Z = T+84
    for s in range(16):
        zb = Z + 16*(s & 1)
        e(f"s_mov_b64 exec, s[{sMask+2*s}:{sMask+2*s+1}]")
        for h in (0, 2): e(f"v_pk_fma_f32 {P(4*s+h)}, {P(4*s+h)}, {P(SC+h)}, {P(SH+h)}")
        for h in (0, 2): e(f"v_pk_mul_f32 {P(zb+h)}, {P(4*s+h)}, {P(4*s+h)}")
        for h in (0, 2): e(f"v_pk_fma_f32 {P(zb+h)}, {P(zb+h)}, {P(C2)}, {P(C1)}")
        for h in (0, 2): e(f"v_pk_mul_f32 {P(zb+h)}, {P(zb+h)}, {P(4*s+h)}")
        for r in range(4): e(f"v_exp_f32 v{zb+r}, v{zb+r}")
        for h in (0, 2): e(f"v_pk_add_f32 {P(zb+h)}, {P(zb+h)}, 1.0 op_sel_hi:[1,0]")
        for r in range(4): e(f"v_rcp_f32 v{zb+r}, v{zb+r}")
        for h in (0, 2): e(f"v_pk_mul_f32 {P(zb+h)}, {P(zb+h)}, {P(4*s+h)}")
        e(f"v_cvt_pk_bf16_f32 v{zb+4}, v{zb}, v{zb+1}")
        e(f"v_cvt_pk_bf16_f32 v{zb+5}, v{zb+2}, v{zb+3}")
        if s == 8:
            e("s_mov_b64 exec, -1")
            e(f"v_add_u32 v{vOut}, 4096, v{vOut}")
            e(f"s_mov_b64 exec, s[{sMask+2*s}:{sMask+2*s+1}]")
        e(f"buffer_store_dwordx2 v[{zb+4}:{zb+5}], v{vOut}, {srd(sO)}, 0 offen offset:{(s & 7)*512}")
    if o.stamp:
        e("s_waitcnt vmcnt(0)")
        e(f"s_memtime s[{sT0+1}:{sT0+2}]")
        e(f"s_memrealtime s[{sMask}:{sMask+1}]")
        e("s_mov_b64 exec, 1")
        e(f"s_lshl_b32 s{sT0}, s2, 2")
        e(f"s_add_u32 s{sT0}, s{sT0}, s{sWave}")
        e(f"s_lshl_b32 s{sT0}, s{sT0}, 6")
        e(f"s_add_u32 s{sT0}, s{sT0}, 0x40000")
        e("s_waitcnt lgkmcnt(0)")
        e("v_mov_b32 v0, 0")
        lst = [sTS+2, sTS+4, sTS+6, sTS+8, sT0+1]
        for k, r in enumerate(lst):
            e(f"s_sub_u32 s{sT3}, s{r}, s{sTS}")
            e(f"v_mov_b32 v1, s{sT3}")
            e(f"buffer_store_dword v1, v0, {srd(sWS)}, s{sT0} offen offset:{4*k}")
        e(f"s_sub_u32 s{sT3}, s{sMask}, s{sTS+10}")
        e(f"v_mov_b32 v1, s{sT3}")
        e(f"buffer_store_dword v1, v0, {srd(sWS)}, s{sT0} offen offset:20")
        e(f"v_mov_b32 v1, s{sTS+10}")
        e(f"buffer_store_dword v1, v0, {srd(sWS)}, s{sT0} offen offset:24")
        e(f"s_getreg_b32 s{sT3}, hwreg(HW_REG_XCC_ID)")
        e(f"v_mov_b32 v1, s{sT3}")
        e(f"buffer_store_dword v1, v0, {srd(sWS)}, s{sT0} offen offset:28")
    e("L_end:")
    e("s_endpgm")
    if o.loader:
        e("L_loader:")
        prologue_dma()
        e("s_waitcnt vmcnt(9)")
        e("s_barrier")
        e("L_lloop:")
        for par in (0, 1):
            nt = 16 - par
            for j in range(nt):
                need = barrier_needs(par, j)
                if need is not None and not o.nobar:
                    e(f"s_waitcnt vmcnt({vmc[(par, j)]})")
                    e("s_barrier")
                if par == 1 and j == 3:
                    e(f"s_cmp_eq_u32 s{sH}, 7"); e(f"s_cselect_b32 s{sW+2}, 0, s{sW+2}")
                if par == 0 and j == 2:
                    e(f"s_cmp_eq_u32 s{sH}, 7"); e(f"s_cselect_b32 s{sX+2}, 0, s{sX+2}")
                if not o.nodma:
                    for r, t in dma_sched(par, j): emit_plain(r)
                if j == nt-1:
                    for x in (f"s_mov_b32 s{sT1}, s{sBufA}", f"s_mov_b32 s{sBufA}, s{sBufB}",
                              f"s_mov_b32 s{sBufB}, s{sBufC}", f"s_mov_b32 s{sBufC}, s{sT1}"): e(x)
        e(f"s_add_u32 s{sX0}, s{sX0}, 64"); e(f"s_add_u32 s{sX1}, s{sX1}, 64")
        e(f"s_add_u32 s{sH}, s{sH}, 1"); e(f"s_cmp_lt_u32 s{sH}, 8")
        e("s_cbranch_scc1 L_lloop")
        e("s_endpgm")
    e('.section .rodata,"a"')
    e(".p2align 6")
    e(f".amdhsa_kernel {o.name}_kernel")
    e(f"  .amdhsa_next_free_vgpr {NV}")
    e("  .amdhsa_next_free_sgpr 102")
    e(f"  .amdhsa_accum_offset {NV}")
    e("  .amdhsa_group_segment_fixed_size 0")
    e("  .amdhsa_kernarg_size 64")
    e("  .amdhsa_user_sgpr_count 2")
    e("  .amdhsa_user_sgpr_kernarg_segment_ptr 1")
    e("  .amdhsa_system_sgpr_workgroup_id_x 1")
    e(".end_amdhsa_kernel")
    return "\n".join(x for x in out if x is not None) + "\n"

if __name__ == "__main__":
    o = Opt()
    path = sys.argv[1]
    for a in sys.argv[2:]:
        k, v = a.split("=")
        setattr(o, k, int(v))
    open(path, "w").write(gen(o))
```

```python
import sys, struct
def f2u(x): return struct.unpack('<I', struct.pack('<f', x))[0]

NAME = "standalone__self_sup_conv_stem_hubert__speech"
HDR = """; Kernarg layout for this problem (64 bytes, ptrs only, base s[0:1]):
"""

class Opt:
    stamp = 0
    lpi = 9
    ppi = 3
    p0 = 6
    dbg = 0
    inv = 0
    dsc1 = 1
    prio = 0
    osc1 = 0
    ont = 0
    warm = 0
    name = NAME

L = 7985
TS = 250
XBYTES = 2*16000*256*2
WBYTES = 31*256*256*2
OBYTES = 2*L*256*2
XBASE = 65536
XBUF = 34816
LDS_BYTES = XBASE + 2*XBUF
WS_HS = 0x100000
WS_S = 0x400000
SIMG = 34816
WS_BYTES = 0x1000000

S1 = 0
S2 = 64
FR = 128
WF = 220
WF2 = 248
vAlo, vAhi, vWrd = 228, 229, 230
PB, PG, PE = 232, 234, 236
vLane, vI, vG, vT0, vT1, vT2, vT3 = 238, 239, 240, 241, 242, 243, 244
vOut, vPoll, vZero = 245, 246, 247
NV = 256
hX0, hX1, hW0, hW1, hLin, hA0, hA1, hB = 8, 9, 10, 11, 12, 13, 14, 15
hT = 16
hD = 32
sX, sW, sO, sWS, sDB, sB, sGA, sBE = 4, 8, 12, 16, 20, 24, 28, 32
sWave, sB_, sTile, sChg, sBt, sRho, sH, sIt, sHook = 36, 37, 38, 39, 40, 41, 42, 43, 44
sT0, sT1, sT2, sT3 = 45, 46, 47, 48
sRec = 49
sWm0, sXm0, sWoff, sWstr, sWb0, sWb1, sXb0, sXb1, sWinc, sXinc, sXoff, sXstr = range(50, 62)
sKc, sP, sSimg, sMsk, sHs0, sHs1 = 62, 63, 64, 65, 66, 67
sXs, sWsrc = 72, 76
sMask = 56
sSign, sO1, sO2, sO3, sRn = 84, 85, 86, 87, 54
sTS = 88

def F(u): return f"v[{FR+4*u}:{FR+4*u+3}]"
def A(s): return f"v[{S1+4*s}:{S1+4*s+3}]"
def Wr(k): return WF2 if k == 2 else WF+4*k
def Wf(k): return f"v[{Wr(k)}:{Wr(k)+3}]"
def srd(r): return f"s[{r}:{r+3}]"
def P(r): return f"v[{r}:{r+1}]"
def Q4(r): return f"v[{r}:{r+3}]"

def gen(o):
    out = []
    e = out.append
    e(HDR + f"; @launch grid=(256,1,1) block=(512,1,1) lds={LDS_BYTES}")
    e('.amdgcn_target "amdgcn-amd-amdhsa--gfx950"')
    e(".text")
    e(f".globl {o.name}_kernel")
    e(".p2align 8")
    e(f".type {o.name}_kernel,@function")
    e(f"{o.name}_kernel:")
    e("s_cmp_ge_u32 s2, 256")
    e("s_cbranch_scc1 L_end")
    def stamp(k):
        if o.stamp: e(f"s_memtime s[{sTS+2*k}:{sTS+2*k+1}]")
    if o.stamp: e(f"s_memrealtime s[{sTS+10}:{sTS+11}]")
    stamp(0)
    e(f"s_load_dwordx4 s[{sXs}:{sXs+3}], s[0:1], 0")
    e(f"v_lshrrev_b32 v1, 6, v0")
    e(f"v_and_b32 v{vLane}, 63, v0")
    e(f"v_readfirstlane_b32 s{sWave}, v1")
    e(f"s_bfe_u32 s{sB_}, s2, 0x10002")
    e(f"s_and_b32 s{sTile}, s2, 3")
    e(f"s_lshl_b32 s{sTile}, s{sTile}, 2")
    e(f"s_bfe_u32 s{sT0}, s2, 0x20003")
    e(f"s_or_b32 s{sTile}, s{sTile}, s{sT0}")
    e(f"s_lshr_b32 s{sChg}, s2, 5")
    e(f"s_load_dwordx2 s[{sWS}:{sWS+1}], s[0:1], 56")
    e(f"s_load_dwordx2 s[{sDB}:{sDB+1}], s[0:1], 48")
    e(f"s_cmp_lt_u32 s{sWave}, 4")
    e("s_cbranch_scc1 L_compute")
    e(f"s_and_b32 s{sRho}, s{sWave}, 1")
    e(f"s_mul_i32 s{sT0}, s{sB_}, {16000*512}")
    e(f"s_mul_i32 s{sT1}, s{sTile}, {4*TS*512}")
    e(f"s_add_u32 s{sT0}, s{sT0}, s{sT1}")
    e(f"s_cmp_ge_u32 s{sWave}, 6")
    e("s_cbranch_scc1 L_trans")
    e(f"s_lshl_b32 s{sT1}, s{sRho}, 14")
    e(f"s_add_u32 s{sT0}, s{sT0}, s{sT1}")
    e(f"v_lshrrev_b32 v1, 3, v{vLane}")
    e(f"v_and_b32 v2, 7, v{vLane}")
    e(f"v_lshlrev_b32 v2, 4, v2")
    e(f"v_lshl_add_u32 v4, v1, 11, v2")
    e(f"v_add_u32 v{hX0}, s{sT0}, v4")
    e(f"v_xor_b32 v{hX1}, 32, v{hX0}")
    e(f"v_lshrrev_b32 v1, 2, v{vLane}")
    e(f"v_and_b32 v3, 48, v2")
    e(f"v_and_b32 v5, 32, v{vLane}")
    e(f"v_xor_b32 v5, v5, v3")
    e(f"v_lshl_add_u32 v5, v1, 9, v5")
    e(f"s_lshl_b32 s{sKc}, s{sChg}, 6")
    e(f"v_add_u32 v{hW0}, s{sKc}, v5")
    e(f"v_add_u32 v{hW1}, 8192, v{hW0}")
    e(f"s_lshl_b32 s{sWm0}, s{sRho}, 11")
    e(f"s_lshl_b32 s{sXm0}, s{sRho}, 10")
    e(f"s_add_u32 s{sXm0}, s{sXm0}, {XBASE}")
    e(f"s_mov_b32 s{sXb0}, 0")
    e(f"s_lshl_b32 s{sWb0}, s{sRho}, 14")
    e(f"s_mov_b32 s{sXstr}, 32768")
    e(f"s_mov_b32 s{sWstr}, 524288")
    def mk_srds():
        e("s_waitcnt lgkmcnt(0)")
        e(f"s_mov_b32 s{sWsrc}, s{sXs+2}")
        e(f"s_and_b32 s{sWsrc+1}, s{sXs+3}, 0xffff")
        e(f"s_mov_b32 s{sWsrc+2}, {WBYTES}")
        e(f"s_mov_b32 s{sWsrc+3}, 0x00020000")
        e(f"s_and_b32 s{sXs+1}, s{sXs+1}, 0xffff")
        e(f"s_mov_b32 s{sXs+2}, {XBYTES}")
        e(f"s_mov_b32 s{sXs+3}, 0x00020000")
    mk_srds()
    if o.stamp: e("s_memtime s[90:91]")
    log = []
    lab = [0]
    def xdma(par, tag, fl=""):
        for k in range(17):
            if k == 16:
                lab[0] += 1
                e(f"s_cmp_lg_u32 s{sRho}, 0")
                e(f"s_cbranch_scc1 L_sk{lab[0]}")
            e(f"s_add_u32 m0, s{sXm0}, {par*XBUF + k*2112}")
            if k == 0: e(f"s_mov_b32 s{sXoff}, s{sXb1 if par else sXb0}")
            else: e(f"s_add_u32 s{sXoff}, s{sXoff}, s{sXstr}")
            e(f"buffer_load_dwordx4 v{hX1 if (k >> 2) & 1 else hX0}, {srd(sXs)}, s{sXoff} offen{fl} lds")
            log.append((tag, k < 16))
        e(f"L_sk{lab[0]}:")
    def wdma(par, i0, tag, fl=""):
        for i in range(i0, i0+4):
            e(f"s_add_u32 m0, s{sWm0}, {(par*8 + i)*4096}")
            if i == 0: e(f"s_mov_b32 s{sWoff}, s{sWb1 if par else sWb0}")
            else: e(f"s_add_u32 s{sWoff}, s{sWoff}, s{sWstr}")
            e(f"buffer_load_dwordx4 v{hW0}, {srd(sWsrc)}, s{sWoff} offen{fl} lds")
            e(f"s_add_u32 m0, m0, 1024")
            e("s_nop 0")
            e(f"buffer_load_dwordx4 v{hW1}, {srd(sWsrc)}, s{sWoff} offen{fl} lds")
            log.extend([(tag, True)]*2)
    def wait_for(tags):
        idx = [i for i, (t, c) in enumerate(log) if t in tags]
        for t in tags: assert any(t == x for x, _ in log), t
        n = sum(1 for t, c in log[max(idx)+1:] if c)
        assert n <= 63
        return n
    def adv():
        e(f"s_add_u32 s{sWb0}, s{sWb0}, s{sWinc}"); e(f"s_add_u32 s{sWb1}, s{sWb1}, s{sWinc}")
        e(f"s_add_u32 s{sXb0}, s{sXb0}, s{sXinc}"); e(f"s_add_u32 s{sXb1}, s{sXb1}, s{sXinc}")
    xdma(0, ("x", 0)); wdma(0, 0, ("w", 0, 0))
    if o.stamp: e("s_memtime s[92:93]")
    e("s_barrier")
    e(f"s_add_u32 s{sXb1}, s{sXb0}, 512")
    e(f"s_add_u32 s{sWb1}, s{sWb0}, 131072")
    e(f"s_mov_b32 s{sWinc}, 32768")
    e(f"s_mov_b32 s{sXinc}, 128")
    xdma(1, ("x", 1)); wdma(0, 4, ("w", 0, 1))
    e(f"s_waitcnt vmcnt({wait_for([('x', 0), ('w', 0, 0)])})")
    if o.stamp: e("s_memtime s[94:95]")
    e("s_barrier")
    wdma(1, 0, ("w", 1, 0)); wdma(1, 4, ("w", 1, 1))
    adv()
    def interval(c, j, fl):
        par = c & 1
        need = [("x", c+1), ("w", c, 1)] if j == 3 else [("w", c+1, 0)]
        n = wait_for(need)
        e(f"s_waitcnt vmcnt({n})")
        e("s_barrier")
        if j == 3:
            xdma(par, ("x", c+2), fl); wdma(par, 0, ("w", c+2, 0), fl)
        else:
            wdma(par, 4, ("w", c+2, 1), fl)
        return n
    e(f"s_mov_b32 s{sIt}, 0")
    e("L_dloop1:")
    e(f"s_cmp_lg_u32 s{sIt}, 3")
    e("s_cbranch_scc1 L_dl1")
    for r in (sWb0, sWb1): e(f"s_add_u32 s{r}, s{r}, 131072")
    for r in (sXb0, sXb1): e(f"s_add_u32 s{r}, s{r}, 512")
    e("L_dl1:")
    n1 = [interval(c, j, "") for c in (0, 1) for j in (3, 7)]
    assert n1 == [16, 32, 16, 32], n1
    adv()
    e(f"s_add_u32 s{sIt}, s{sIt}, 1")
    e(f"s_cmp_lt_u32 s{sIt}, 7")
    e("s_cbranch_scc1 L_dloop1")
    e(f"s_mov_b32 s{sXs}, s{sWS}")
    e(f"s_and_b32 s{sXs+1}, s{sWS+1}, 0xffff")
    e(f"s_mov_b32 s{sXs+2}, {WS_BYTES}")
    for q in range(3): e(f"s_mov_b32 s{sWsrc+q}, s{sXs+q}")
    e(f"v_lshlrev_b32 v{hW0}, 4, v{vLane}")
    e(f"s_lshl_b32 s{sT0}, s{sRho}, 10")
    e(f"v_add_u32 v{hX0}, s{sT0}, v{hW0}")
    e(f"v_add_u32 v{hX1}, s{sT0}, v{hW0}")
    e(f"v_add_u32 v{hW1}, 1024, v{hW0}")
    e(f"s_lshl_b32 s{sT1}, s{sB_}, 4")
    e(f"s_or_b32 s{sT1}, s{sT1}, s{sTile}")
    e(f"s_mul_i32 s{sXb0}, s{sT1}, {8*SIMG}")
    e(f"s_add_u32 s{sXb0}, s{sXb0}, {WS_S}")
    e(f"s_add_u32 s{sXb1}, s{sXb0}, {4*SIMG}")
    e(f"s_mov_b32 s{sXinc}, {SIMG}")
    e(f"s_mov_b32 s{sXstr}, 2048")
    e(f"s_lshl_b32 s{sWb0}, s{sChg}, 18")
    e(f"s_lshl_b32 s{sT0}, s{sRho}, 17")
    e(f"s_add_u32 s{sWb0}, s{sWb0}, s{sT0}")
    e(f"s_add_u32 s{sWb0}, s{sWb0}, {WS_HS}")
    e(f"s_add_u32 s{sWb1}, s{sWb0}, 16384")
    e(f"s_mov_b32 s{sWinc}, 32768")
    e(f"s_mov_b32 s{sWstr}, 2048")
    e("L_dloop2:")
    n2 = [interval(c, j, " sc1") for c in (2, 3) for j in (3, 7)]
    assert n2 == n1
    adv()
    e(f"s_add_u32 s{sIt}, s{sIt}, 1")
    e(f"s_cmp_lt_u32 s{sIt}, 11")
    e("s_cbranch_scc1 L_dloop2")
    for n in (16, 8, 0):
        e(f"s_waitcnt vmcnt({n})")
        e("s_barrier")
    if o.stamp:
        e(f"s_lshl_b32 s{sT0}, s2, 2")
        e(f"s_add_u32 s{sT0}, s{sT0}, s{sRho}")
        e(f"s_lshl_b32 s{sT0}, s{sT0}, 6")
        e(f"s_add_u32 s{sT0}, s{sT0}, 0x40020")
        e("s_mov_b64 exec, 1")
        e("v_mov_b32 v0, 0")
        for k in range(3):
            e(f"s_sub_u32 s{sT1}, s{90+2*k}, s{sTS}")
            e(f"v_mov_b32 v1, s{sT1}")
            e(f"buffer_store_dword v1, v0, {srd(sXs)}, s{sT0} offen offset:{4*k}")
    e("s_endpgm")
    e("L_trans:")
    log = []
    e(f"s_mul_i32 s{sP}, s{sChg}, 17")
    e(f"s_lshl_b32 s{sT1}, s{sP}, 12")
    e(f"s_add_u32 s{sT0}, s{sT0}, s{sT1}")
    e(f"s_lshl_b32 s{sT1}, s{sRho}, 9")
    e(f"s_add_u32 s{sT0}, s{sT0}, s{sT1}")
    e(f"s_add_u32 s{sT0}, s{sT0}, 1024")
    e(f"v_lshrrev_b32 v1, 5, v{vLane}")
    e(f"v_and_b32 v2, 31, v{vLane}")
    e(f"v_lshlrev_b32 v2, 4, v2")
    e(f"v_lshl_add_u32 v2, v1, 11, v2")
    e(f"v_add_u32 v{hA0}, s{sT0}, v2")
    e(f"v_lshlrev_b32 v{hLin}, 4, v{vLane}")
    e(f"s_lshr_b32 s{sT2}, s2, 5")
    e(f"s_lshl_b32 s{sHs0}, s{sT2}, 19")
    e(f"s_lshl_b32 s{sHs1}, s{sT2}, 11")
    e(f"s_bfe_u32 s{sT2}, s2, 0x10004")
    e(f"s_lshl_b32 s{sT3}, s{sT2}, 17")
    e(f"s_add_u32 s{sHs0}, s{sHs0}, s{sT3}")
    e(f"s_lshl_b32 s{sT3}, s{sT2}, 14")
    e(f"s_add_u32 s{sHs1}, s{sHs1}, s{sT3}")
    e(f"s_and_b32 s{sT2}, s2, 15")
    e(f"s_lshl_b32 s{sT2}, s{sT2}, 13")
    e(f"s_add_u32 s{sHs0}, s{sHs0}, s{sT2}")
    e(f"s_lshl_b32 s{sT2}, s{sRho}, 12")
    e(f"s_add_u32 s{sHs0}, s{sHs0}, s{sT2}")
    mk_srds()
    units = [("s", u) for u in range(17)] + [("h", k) for k in range(4)]
    NU = len(units)
    loads = [(n, 0) for n in range(17)] + [(n, 1) for n in range(17)] + [(n, h) for n in range(17, 21) for h in (0, 1)]
    def uload(n, h):
        kind, k = units[n]; d = hD + 8*n + 4*h
        if kind == "s":
            e(f"s_mov_b32 s{sT0}, {k*4096 + (0 if h else 1024)}")
            e(f"buffer_load_dwordx4 {Q4(d)}, v{hA0}, {srd(sXs)}, s{sT0} offen")
        else:
            e(f"s_add_u32 s{sT0}, s{sHs0}, {k*1024 + h*262144}")
            e(f"buffer_load_dwordx4 {Q4(d)}, v{hLin}, {srd(sWsrc)}, s{sT0} offen")
        log.append((("ul", n, h), True))
    def uproc(n):
        kind, k = units[n]; d = hD + 8*n; t = hT; ob = hT + 4 + 4*(n & 1)
        e(f"s_waitcnt vmcnt({wait_for([('ul', n, 0), ('ul', n, 1)])})")
        ng = "-" if kind == "h" else ""
        for q in range(4):
            a, b = d+q, d+4+q
            e(f"v_lshlrev_b32 v{t}, 16, v{a}")
            e(f"v_lshlrev_b32 v{t+1}, 16, v{b}")
            e(f"v_and_b32 v{t+2}, s{sMsk}, v{a}")
            e(f"v_and_b32 v{t+3}, s{sMsk}, v{b}")
            e(f"v_add_f32 v{t}, {ng}v{t}, {ng}v{t+1}")
            e(f"v_add_f32 v{t+2}, {ng}v{t+2}, {ng}v{t+3}")
            e(f"v_cvt_pk_bf16_f32 v{ob+q}, v{t}, v{t+2}")
        if kind == "s":
            e(f"s_add_u32 s{sT1}, s{sP}, {k}")
            e(f"s_and_b32 s{sT1}, s{sT1}, 32")
            e(f"v_xor_b32 v{hB}, s{sT1}, v{hX0}")
            e(f"s_add_u32 s{sT0}, s{sSimg}, {k*256}")
            e(f"buffer_store_dwordx4 {Q4(ob)}, v{hB}, {srd(sWS)}, s{sT0} offen sc1")
        else:
            e(f"s_add_u32 s{sT0}, s{sHs1}, {k*128}")
            e(f"buffer_store_dwordx4 {Q4(ob)}, v{hX1}, {srd(sWS)}, s{sT0} offen sc1")
        log.append((("us", n), True))
    e("s_barrier")
    li = 0
    def some_loads(cnt):
        nonlocal li
        for n, h in loads[li:li+cnt]: uload(n, h)
        li = min(len(loads), li+cnt)
    some_loads(17)
    for r, n in ((sWS, WS_BYTES), (sDB, 256)):
        e(f"s_and_b32 s{r+1}, s{r+1}, 0xffff")
        e(f"s_mov_b32 s{r+2}, {n}")
        e(f"s_mov_b32 s{r+3}, 0x00020000")
    e(f"s_lshl_b32 s{sBt}, s{sB_}, 4")
    e(f"s_or_b32 s{sBt}, s{sBt}, s{sTile}")
    e(f"s_mov_b32 s{sMsk}, 0xffff0000")
    e(f"s_lshl_b32 s{sT1}, s{sBt}, 1")
    e(f"s_add_u32 s{sT1}, s{sT1}, s{sRho}")
    e(f"s_mul_i32 s{sSimg}, s{sT1}, {4*SIMG}")
    e(f"s_lshl_b32 s{sT1}, s{sP}, 8")
    e(f"s_add_u32 s{sSimg}, s{sSimg}, s{sT1}")
    e(f"s_add_u32 s{sSimg}, s{sSimg}, {WS_S}")
    e(f"v_bfe_u32 v2, v{vLane}, 3, 2")
    e(f"v_mul_u32_u24 v2, {SIMG}, v2")
    e(f"v_lshl_add_u32 v2, v1, 7, v2")
    e(f"v_and_b32 v3, 7, v{vLane}")
    e(f"v_lshl_add_u32 v{hX0}, v3, 4, v2")
    e(f"v_bfe_u32 v2, v{vLane}, 2, 3")
    e(f"v_lshlrev_b32 v2, 18, v2")
    e(f"v_lshl_add_u32 v2, v1, 6, v2")
    e(f"v_and_b32 v3, 3, v{vLane}")
    e(f"v_lshl_add_u32 v2, v3, 4, v2")
    e(f"s_lshl_b32 s{sT1}, s{sRho}, 5")
    e(f"v_xor_b32 v{hX1}, s{sT1}, v2")
    e(f"s_bfe_u32 s{sT2}, s2, 0x10001")
    e(f"s_lshl_b32 s{sT2}, s{sT2}, 17")
    e(f"s_add_u32 s{sHs1}, s{sHs1}, s{sT2}")
    e(f"s_bfe_u32 s{sT2}, s2, 0x20002")
    e(f"s_lshl_b32 s{sT2}, s{sT2}, 15")
    e(f"s_add_u32 s{sHs1}, s{sHs1}, s{sT2}")
    e(f"s_and_b32 s{sT2}, s2, 1")
    e(f"s_lshl_b32 s{sT2}, s{sT2}, 10")
    e(f"s_add_u32 s{sHs1}, s{sHs1}, s{sT2}")
    e(f"s_lshl_b32 s{sT2}, s{sRho}, 9")
    e(f"s_add_u32 s{sHs1}, s{sHs1}, s{sT2}")
    e(f"s_add_u32 s{sHs1}, s{sHs1}, {WS_HS}")
    e(f"s_lshl_b32 s{sRec}, s{sB_}, 3")
    e(f"s_or_b32 s{sRec}, s{sRec}, s{sChg}")
    e(f"s_lshl_b32 s{sRec}, s{sRec}, 13")
    e(f"s_lshl_b32 s{sT2}, s{sRho}, 4")
    e(f"s_add_u32 s{sT2}, s{sT2}, s{sTile}")
    e(f"s_lshl_b32 s{sT2}, s{sT2}, 7")
    e(f"s_add_u32 s{sT2}, s{sT2}, s{sRec}")
    e(f"v_and_b32 v6, 31, v{vLane}")
    e(f"v_lshlrev_b32 v6, 2, v6")
    e(f"v_lshl_add_u32 v6, v1, 12, v6")
    e(f"v_mov_b32 v7, -1")
    e("s_barrier")
    e(f"buffer_store_dword v7, v6, {srd(sWS)}, s{sT2} offen sc1")
    log.append(("rst", True))
    m = -1
    pi = 0
    while pi < NU:
        some_loads(o.lpi)
        if m + 1 >= o.p0:
            assert li == len(loads)
            for n in range(pi, min(NU, pi+o.ppi)): uproc(n)
            pi += o.ppi
        e("s_barrier"); m += 1
    for _ in range(2):
        e("s_barrier"); m += 1
    e("s_waitcnt vmcnt(0)")
    e("s_barrier"); m += 1
    e(f"s_cmp_lg_u32 s{sWave}, 6")
    e("s_cbranch_scc1 L_end2")
    e("s_mov_b64 exec, 1")
    e("v_mov_b32 v6, 0")
    e("v_mov_b32 v7, 1")
    e(f"buffer_atomic_add v7, v6, {srd(sDB)}, 0 offen sc1")
    lastm = 25
    assert m < lastm
    e(f"s_mov_b32 s{sIt}, {m}")
    e("L_tw:")
    e("s_barrier")
    e(f"s_add_u32 s{sIt}, s{sIt}, 1")
    e(f"s_cmp_lt_u32 s{sIt}, {lastm}")
    e("s_cbranch_scc1 L_tw")
    e(f"buffer_load_dword v7, v6, {srd(sDB)}, 0 offen sc1")
    e("s_barrier")
    e("s_barrier")
    e(f"s_mov_b32 s{sT3}, 0")
    e("L_tp:")
    e("s_waitcnt vmcnt(0)")
    e(f"v_readfirstlane_b32 s{sT2}, v7")
    e(f"s_add_u32 s{sT3}, s{sT3}, 1")
    e(f"s_cmp_ge_u32 s{sT2}, 256")
    e("s_cbranch_scc1 L_tq")
    e(f"s_cmp_ge_u32 s{sT3}, 0x20000")
    e("s_cbranch_scc1 L_tq")
    e(f"buffer_load_dword v7, v6, {srd(sDB)}, 0 offen sc1")
    e("s_branch L_tp")
    e("L_tq:")
    e("s_barrier")
    e("L_end2:")
    e("s_endpgm")
    e(".p2align 6")
    e("L_compute:")
    e(f"s_bfe_u32 s{sRho}, s{sWave}, 0x10001")
    e(f"s_and_b32 s{sH}, s{sWave}, 1")
    e(f"s_lshl_b32 s{sRec}, s{sB_}, 3")
    e(f"s_or_b32 s{sRec}, s{sRec}, s{sChg}")
    e(f"s_lshl_b32 s{sRec}, s{sRec}, 1")
    e(f"s_or_b32 s{sRec}, s{sRec}, s{sH}")
    e(f"s_lshl_b32 s{sRec}, s{sRec}, 12")
    if o.prio: e(f"s_setprio {o.prio}")
    e(f"s_load_dwordx2 s[{sB}:{sB+1}], s[0:1], 16")
    e(f"s_load_dwordx2 s[{sGA}:{sGA+1}], s[0:1], 24")
    e(f"s_load_dwordx2 s[{sBE}:{sBE+1}], s[0:1], 32")
    e(f"s_load_dwordx2 s[{sO}:{sO+1}], s[0:1], 40")
    for r, n in ((sO, OBYTES), (sWS, WS_BYTES), (sDB, 256), (sB, 512), (sGA, 512), (sBE, 512)):
        e(f"s_mov_b32 s{r+2}, {n}")
        e(f"s_mov_b32 s{r+3}, 0x00020000")
    e(f"v_and_b32 v{vI}, 15, v{vLane}")
    e(f"v_lshrrev_b32 v{vG}, 4, v{vLane}")
    e(f"s_lshl_b32 s{sT0}, s{sRho}, 6")
    e(f"s_add_u32 s{sT0}, s{sT0}, {XBASE}")
    e(f"s_movk_i32 s{sT1}, 2112")
    for dst, add in ((vAlo, 0), (vAhi, 1)):
        e(f"v_add_u32 v{vT1}, {add}, v{vI}")
        e(f"v_bfe_u32 v{vT0}, v{vT1}, 2, 1")
        e(f"v_lshlrev_b32 v{vT0}, 1, v{vT0}")
        e(f"v_xor_b32 v{vT0}, v{vT0}, v{vG}")
        e(f"v_lshlrev_b32 v{vT0}, 4, v{vT0}")
        e(f"v_mad_u32_u24 v{dst}, v{vT1}, s{sT1}, v{vT0}")
        e(f"v_add_u32 v{dst}, s{sT0}, v{dst}")
    e(f"v_lshrrev_b32 v{vT0}, 2, v{vI}")
    e(f"v_lshl_add_u32 v{vT1}, v{vG}, 3, v{vT0}")
    e(f"v_and_b32 v{vT2}, 1, v{vG}")
    e(f"v_xor_b32 v{vT2}, s{sH}, v{vT2}")
    e(f"v_lshlrev_b32 v{vT2}, 5, v{vT2}")
    e(f"v_lshl_add_u32 v{vT1}, v{vT1}, 6, v{vT2}")
    e(f"v_and_b32 v{vT2}, 3, v{vLane}")
    e(f"v_lshl_add_u32 v{vWrd}, v{vT2}, 3, v{vT1}")
    e(f"s_lshl_b32 s{sT0}, s{sRho}, 11")
    e(f"v_add_u32 v{vWrd}, s{sT0}, v{vWrd}")
    e(f"s_lshl_b32 s{sT0}, s{sChg}, 6")
    e(f"s_lshl_b32 s{sT1}, s{sH}, 5")
    e(f"s_add_u32 s{sT0}, s{sT0}, s{sT1}")
    e(f"v_lshlrev_b32 v{vT0}, 3, v{vG}")
    e(f"v_add_u32 v{vT0}, s{sT0}, v{vT0}")
    e(f"s_mul_i32 s{sT1}, s{sB_}, {L}")
    e(f"s_mul_i32 s{sT2}, s{sTile}, {2*TS}")
    e(f"s_add_u32 s{sT1}, s{sT1}, s{sT2}")
    e(f"s_add_u32 s{sT1}, s{sT1}, s{sRho}")
    e(f"s_lshl_b32 s{sT1}, s{sT1}, 9")
    e(f"v_lshl_add_u32 v{vOut}, v{vI}, 14, v{vT0}")
    e(f"v_add_u32 v{vOut}, s{sT1}, v{vOut}")
    e(f"v_mov_b32 v{vZero}, 0")
    e(f"s_mov_b32 s{sIt}, 0")
    e("s_waitcnt lgkmcnt(0)")
    for r in (sO, sWS, sDB, sB, sGA, sBE): e(f"s_and_b32 s{r+1}, s{r+1}, 0xffff")
    e(f"buffer_load_dwordx2 {P(PB)}, v{vT0}, {srd(sB)}, 0 offen")
    e(f"buffer_load_dwordx2 {P(PG)}, v{vT0}, {srd(sGA)}, 0 offen")
    e(f"buffer_load_dwordx2 {P(PE)}, v{vT0}, {srd(sBE)}, 0 offen")
    e(f"s_sub_u32 s{sT1}, 3, s{sRho}")
    e(f"s_cmp_eq_u32 s{sTile}, 15")
    e(f"s_cselect_b32 s{sT1}, s{sT1}, {TS-240}")
    e(f"s_mov_b32 s{sT2}, {f2u(1.0/243)}")
    e(f"s_cmp_eq_u32 s{sT1}, 2")
    e(f"s_cselect_b32 s{sT2}, {f2u(1.0/242)}, s{sT2}")
    e(f"s_cmp_eq_u32 s{sT1}, {TS-240}")
    e(f"s_cselect_b32 s{sRn}, {f2u(1.0/TS)}, s{sT2}")
    for s in range(2, 16):
        m = sMask + 2*(s-2)
        e(f"s_cmp_gt_u32 s{sT1}, {s}")
        e(f"s_cselect_b32 s{m}, -1, 0x7fff7fff")
        e(f"s_mov_b32 s{m+1}, s{m}")
    e(f"s_cmp_eq_u32 s{sRho}, 0")
    e(f"s_cselect_b32 s{sSign}, 1.0, -1.0")
    e(f"s_movk_i32 s{sO1}, 4096")
    e(f"s_movk_i32 s{sO2}, 8192")
    e(f"s_movk_i32 s{sO3}, 12288")
    e("s_barrier")
    for r in range(0, 128, 2): e(f"v_mov_b64 {P(r)}, 0")
    def xread(u, par):
        return f"ds_read_b128 {F(u)}, v{vAhi if u >= 16 else vAlo} offset:{par*XBUF + (u & 15)*128}"
    def wb(t): return 2 if t == 14 else (t & 1)
    def wread(slot):
        r = Wr(wb(slot))
        return [f"ds_read_b64_tr_b16 v[{r}:{r+1}], v{vWrd} offset:{slot*4096}",
                f"ds_read_b64_tr_b16 v[{r+2}:{r+3}], v{vWrd} offset:{slot*4096+256}"]
    e("s_barrier")
    stamp(1)
    for x in wread(0): e(x)
    for u in range(16): e(xread(u, 0))
    def body(name, acc, short, lim):
        e(".p2align 4")
        e(f"L_loop{name}:")
        if o.stamp >= 2:
            e(f"s_mov_b32 m0, s{sIt}")
            e("s_nop 0")
            e(f"v_writelane_b32 v252, s100, m0")
            e("s_memtime s[100:101]")
        for par in (0, 1):
            nt = 7 if (short and par == 1) else 8
            for j in range(nt):
                t = par*8 + j
                last = j == nt-1
                e(f"s_waitcnt lgkmcnt({9 if j == 0 else 0})")
                if j == 3 or last: e("s_barrier")
                fill = [[] for _ in range(16)]
                fill[0] += wread(((par+1)*8) & 15 if last else t+1)
                np_ = par ^ 1
                if j == 0:
                    fill[1] += [xread(16, par), xread(17, par)]; fill[2] += [xread(18, par)]
                    fill[6] += ["s_waitcnt lgkmcnt(5)"]
                elif j == 1: fill[1] += [xread(19, par), xread(20, par)]
                elif j == 2: fill[1] += [xread(21, par)] + ([xread(22, par)] if nt == 8 else [])
                elif j == 3: fill[1] += [xread(0, np_), xread(1, np_)]; fill[2] += [xread(2, np_)]
                elif not last: fill[1] += [xread(j-1, np_)]
                elif j == 7:
                    fill[1] += [xread(6, np_), xread(7, np_)]
                    fill[2] += [xread(8, np_), xread(9, np_)]
                    for u in range(10, 16): fill[u-7] += [xread(u, np_)]
                else:
                    fill[1] += [xread(5, np_), xread(6, np_)]
                    fill[2] += [xread(7, np_), xread(8, np_)]
                    for u in range(9, 16): fill[u-6] += [xread(u, np_)]
                if last and par == 1:
                    fill[13] += [f"s_add_u32 s{sIt}, s{sIt}, 1"]
                    fill[14] += [f"s_cmp_lt_u32 s{sIt}, {lim}"]
                for s in range(16):
                    e(f"v_mfma_f32_16x16x32_bf16 {Q4(acc+4*s)}, {Wf(wb(t))}, {F(j+s)}, {Q4(acc+4*s)}")
                    for x in fill[s]: e(x)
        e(f"s_cbranch_scc1 L_loop{name}")
    body("A", S2, False, 4)
    body("B", S1, True, 8)
    for r in range(4): e(f"v_mov_b32_dpp v{vT0+r}, v{S2+r} row_shl:1 row_mask:0xf bank_mask:0xf")
    e("s_waitcnt vmcnt(0)")
    for s in range(16):
        if s == 14: e("s_nop 3")
        for h in (0, 2): e(f"v_pk_add_f32 {P(S2+4*s+h)}, {P(S2+4*s+h)}, {P(S1+4*s+h)}")
        if s < 15:
            for h in (0, 2): e(f"v_pk_add_f32 {P(S1+4*s+h)}, {P(S1+4*s+h)}, {P(S2+4*s+4+h)}")
        else:
            for r in range(4): e(f"v_add_f32 v{S1+60+r}, v{S1+60+r}, v{vT0+r}")
    e("s_nop 1")
    body("Q", S1, False, 12)
    stamp(2)
    T = FR
    e(f"s_lshl_b32 s{sT0}, s{sWave}, 14")
    e(f"v_lshlrev_b32 v{vT0}, 4, v{vLane}")
    e(f"v_add_u32 v{vT1}, s{sT0}, v{vT0}")
    e(f"s_xor_b32 s{sT0}, s{sT0}, 0x8000")
    e(f"v_add_u32 v{vT2}, s{sT0}, v{vT0}")
    e(f"s_cmp_lg_u32 s{sRho}, 0")
    e("s_cbranch_scc1 L_x1")
    def zero_invalid():
        for s in range(2, 16):
            m = sMask + 2*(s-2)
            e(f"s_not_b64 exec, s[{m}:{m+1}]")
            e(f"v_mov_b64 {P(S1+4*s)}, 0")
            e(f"v_mov_b64 {P(S1+4*s+2)}, 0")
    def xadd(src):
        for s in range(16):
            if s >= 2: e(f"s_mov_b64 exec, s[{sMask+2*(s-2)}:{sMask+2*(s-2)+1}]")
            else: e("s_mov_b64 exec, -1") if s == 0 else None
            if s % 4 == 0: e(f"s_waitcnt lgkmcnt({12-s})")
            for h in (0, 2): e(f"v_pk_add_f32 {P(S1+4*s+h)}, {P(src+4*s+h)}, {P(T+4*s+h)}")
        e("s_mov_b64 exec, -1")
    for s in range(16): e(f"ds_write_b128 v{vT1}, {Q4(S1+4*s)} offset:{s*1024}")
    e("s_waitcnt lgkmcnt(0)")
    e("s_barrier")
    for s in range(16): e(f"ds_read_b128 {Q4(T+4*s)}, v{vT2} offset:{s*1024}")
    zero_invalid()
    xadd(S2)
    e("s_branch L_x2")
    e("L_x1:")
    for s in range(16): e(f"ds_write_b128 v{vT1}, {Q4(S2+4*s)} offset:{s*1024}")
    e("s_waitcnt lgkmcnt(0)")
    e("s_barrier")
    for s in range(16): e(f"ds_read_b128 {Q4(T+4*s)}, v{vT2} offset:{s*1024}")
    zero_invalid()
    xadd(S1)
    e("L_x2:")
    for k in range(8):
        for h in (0, 2): e(f"v_pk_add_f32 {P(T+4*k+h)}, {P(8*k+h)}, {P(8*k+4+h)}")
    for n in (4, 2, 1):
        for k in range(n):
            for h in (0, 2): e(f"v_pk_add_f32 {P(T+4*k+h)}, {P(T+4*k+h)}, {P(T+4*(k+n)+h)}")
    def dppred(base):
        e("s_nop 1")
        for sh in (8, 4, 2, 1):
            for r in range(4):
                e(f"v_add_f32_dpp v{base+r}, v{base+r}, v{base+r} row_ror:{sh} row_mask:0xf bank_mask:0xf")
    dppred(T)
    ML = T+4
    for r in range(4): e(f"v_mul_f32 v{ML+r}, s{sRn}, v{T+r}")
    Q = T+8
    for s in range(16):
        if s >= 2: e(f"s_mov_b64 exec, s[{sMask+2*(s-2)}:{sMask+2*(s-2)+1}]")
        for h in (0, 2): e(f"v_pk_add_f32 {P(4*s+h)}, {P(4*s+h)}, {P(ML+h)} neg_lo:[0,1] neg_hi:[0,1]")
    e("s_mov_b64 exec, -1")
    for s in range(16):
        for h in (0, 2):
            q = Q + 4*(s & 3) + h
            if s < 4: e(f"v_pk_mul_f32 {P(q)}, {P(4*s+h)}, {P(4*s+h)}")
            else: e(f"v_pk_fma_f32 {P(q)}, {P(4*s+h)}, {P(4*s+h)}, {P(q)}")
    for h in (0, 2):
        e(f"v_pk_add_f32 {P(Q+h)}, {P(Q+h)}, {P(Q+4+h)}")
        e(f"v_pk_add_f32 {P(Q+8+h)}, {P(Q+8+h)}, {P(Q+12+h)}")
    for h in (0, 2): e(f"v_pk_add_f32 {P(Q+h)}, {P(Q+h)}, {P(Q+8+h)}")
    for r in range(4): e(f"v_mul_f32 v{T+r}, s{sSign}, v{T+r}")
    dppred(Q)
    PUB = T+24
    e(f"v_cmp_eq_u32 vcc, 0, v{vI}")
    e(f"s_lshl_b32 s{sT1}, s{sRho}, 4")
    e(f"s_add_u32 s{sT1}, s{sT1}, s{sTile}")
    e(f"s_lshl_b32 s{sT1}, s{sT1}, 7")
    e(f"s_add_u32 s{sT1}, s{sT1}, s{sRec}")
    for r in range(4): e(f"v_cndmask_b32 v{PUB+r}, v{Q+r}, v{T+r}, vcc")
    e(f"v_lshlrev_b32 v{vT1}, 5, v{vG}")
    e(f"v_lshl_add_u32 v{vT2}, v{vI}, 4, v{vT1}")
    e("s_mov_b32 exec_lo, 0x00030003")
    e("s_mov_b32 exec_hi, 0x00030003")
    e(f"buffer_store_dwordx4 {Q4(PUB)}, v{vT2}, {srd(sWS)}, s{sT1} offen sc1")
    e("s_mov_b64 exec, -1")
    stamp(3)
    e(f"v_lshl_add_u32 v{vT2}, v{vI}, 7, v{vT1}")
    RA = T+32
    def recloads():
        e(f"buffer_load_dwordx4 {Q4(RA)}, v{vT2}, {srd(sWS)}, s{sRec} offen sc1")
        e(f"buffer_load_dwordx4 {Q4(RA+8)}, v{vT2}, {srd(sWS)}, s{sRec} offen offset:2048 sc1")
        e(f"buffer_load_dwordx4 {Q4(RA+4)}, v{vT2}, {srd(sWS)}, s{sRec} offen offset:16 sc1")
        e(f"buffer_load_dwordx4 {Q4(RA+12)}, v{vT2}, {srd(sWS)}, s{sRec} offen offset:2064 sc1")
    recloads()
    UB, UG, UE = T+48, T+52, T+56
    for src, dst in ((PB, UB), (PG, UG), (PE, UE)):
        for h in range(2):
            e(f"v_lshlrev_b32 v{dst+2*h}, 16, v{src+h}")
            e(f"v_and_b32 v{dst+2*h+1}, 0xffff0000, v{src+h}")
    vNA, vRA_, vNB, vRB = T+60, T+61, T+62, T+63
    e(f"v_cmp_eq_u32 vcc, 15, v{vI}")
    for d, a, b in ((vNA, TS, 243), (vRA_, 1.0/TS, 1.0/243), (vNB, TS, 242), (vRB, 1.0/TS, 1.0/242)):
        e(f"v_mov_b32 v{d}, {f2u(float(a))}")
        e(f"v_mov_b32 v{vT3}, {f2u(float(b))}")
        e(f"v_cndmask_b32 v{d}, v{d}, v{vT3}, vcc")
    for r in range(4): e(f"v_mul_f32 v{ML+r}, s{sSign}, v{ML+r}")
    c1 = -2.0*1.4426950408889634*0.7978845608028654
    c2 = c1*0.044715
    C1, C2 = T+80, T+82
    for h in range(2):
        e(f"v_mov_b32 v{C1+h}, {f2u(c1)}")
        e(f"v_mov_b32 v{C2+h}, {f2u(c2)}")
    e(f"s_mov_b32 s{sT3}, 0")
    e("L_poll:")
    e("s_waitcnt vmcnt(0)")
    MX = T+64
    e(f"v_max3_u32 v{MX}, v{RA}, v{RA+1}, v{RA+2}")
    e(f"v_max3_u32 v{MX+1}, v{RA+3}, v{RA+4}, v{RA+5}")
    e(f"v_max3_u32 v{MX+2}, v{RA+6}, v{RA+7}, v{RA+8}")
    e(f"v_max3_u32 v{MX+3}, v{RA+9}, v{RA+10}, v{RA+11}")
    e(f"v_max3_u32 v{MX}, v{MX}, v{RA+12}, v{RA+13}")
    e(f"v_max3_u32 v{MX+1}, v{MX+1}, v{RA+14}, v{RA+15}")
    e(f"v_max3_u32 v{MX}, v{MX}, v{MX+2}, v{MX+3}")
    e(f"v_max_u32 v{MX}, v{MX}, v{MX+1}")
    e(f"v_cmp_eq_u32 vcc, -1, v{MX}")
    e(f"s_add_u32 s{sT3}, s{sT3}, 1")
    e("s_nop 0")
    e("s_cbranch_vccz L_pollx")
    e(f"s_cmp_ge_u32 s{sT3}, 0x20000")
    e("s_cbranch_scc1 L_pollx")
    recloads()
    e("s_branch L_poll")
    e("L_pollx:")
    MU = T+64
    for r in range(4): e(f"v_add_f32 v{MU+r}, v{RA+r}, v{RA+8+r}")
    dppred(MU)
    e(f"s_mov_b32 s{sT1}, {f2u(1.0/L)}")
    for r in range(4): e(f"v_mul_f32 v{MU+r}, s{sT1}, v{MU+r}")
    for r in range(4):
        e(f"v_fma_f32 v{RA+r}, v{RA+r}, v{vRA_}, -v{MU+r}")
        e(f"v_fma_f32 v{RA+8+r}, v{RA+8+r}, v{vRB}, -v{MU+r}")
    for r in range(4):
        e(f"v_mul_f32 v{RA+r}, v{RA+r}, v{RA+r}")
        e(f"v_mul_f32 v{RA+8+r}, v{RA+8+r}, v{RA+8+r}")
    for r in range(4):
        e(f"v_fma_f32 v{RA+4+r}, v{RA+r}, v{vNA}, v{RA+4+r}")
        e(f"v_fma_f32 v{RA+12+r}, v{RA+8+r}, v{vNB}, v{RA+12+r}")
    VAR = T+68
    for r in range(4): e(f"v_add_f32 v{VAR+r}, v{RA+4+r}, v{RA+12+r}")
    dppred(VAR)
    e(f"v_mov_b32 v{vT1}, {f2u(1e-5)}")
    for r in range(4): e(f"v_fma_f32 v{VAR+r}, v{VAR+r}, s{sT1}, v{vT1}")
    for r in range(4): e(f"v_rsq_f32 v{VAR+r}, v{VAR+r}")
    SC, SH = T+72, T+76
    for r in range(4): e(f"v_add_f32 v{MU+r}, v{MU+r}, v{UB+r}")
    for r in range(4): e(f"v_add_f32 v{ML+r}, v{ML+r}, v{UB+r}")
    for r in range(4): e(f"v_mul_f32 v{SC+r}, v{VAR+r}, v{UG+r}")
    for r in range(4): e(f"v_sub_f32 v{ML+r}, v{ML+r}, v{MU+r}")
    for r in range(4): e(f"v_fma_f32 v{SH+r}, v{ML+r}, v{SC+r}, v{UE+r}")
    for r in range(4): e(f"v_mul_f32 v{SC+r}, s{sSign}, v{SC+r}")
    stamp(4)
    Z = S2
    oflags = (" sc1" if o.osc1 else "") + (" nt" if o.ont else "")
    for s in range(16):
        zb = Z + 8*(s & 3)
        if s >= 2: e(f"s_mov_b64 exec, s[{sMask+2*(s-2)}:{sMask+2*(s-2)+1}]")
        for h in (0, 2): e(f"v_pk_fma_f32 {P(4*s+h)}, {P(4*s+h)}, {P(SC+h)}, {P(SH+h)}")
        for h in (0, 2): e(f"v_pk_mul_f32 {P(zb+h)}, {P(4*s+h)}, {P(4*s+h)}")
        for h in (0, 2): e(f"v_pk_fma_f32 {P(zb+h)}, {P(zb+h)}, {P(C2)}, {P(C1)}")
        for h in (0, 2): e(f"v_pk_mul_f32 {P(zb+h)}, {P(zb+h)}, {P(4*s+h)}")
        for r in range(4): e(f"v_exp_f32 v{zb+r}, v{zb+r}")
        for h in (0, 2): e(f"v_pk_add_f32 {P(zb+h)}, {P(zb+h)}, 1.0 op_sel_hi:[1,0]")
        for r in range(4): e(f"v_rcp_f32 v{zb+r}, v{zb+r}")
        for h in (0, 2): e(f"v_pk_mul_f32 {P(zb+h)}, {P(zb+h)}, {P(4*s+h)}")
        e(f"v_cvt_pk_bf16_f32 v{zb+4}, v{zb}, v{zb+1}")
        e(f"v_cvt_pk_bf16_f32 v{zb+5}, v{zb+2}, v{zb+3}")
        so = ("0", f"s{sO1}", f"s{sO2}", f"s{sO3}")[s >> 2]
        e(f"buffer_store_dwordx2 v[{zb+4}:{zb+5}], v{vOut}, {srd(sO)}, {so} offen offset:{(s & 3)*1024}{oflags}")
    if o.stamp:
        e("s_waitcnt vmcnt(0)")
        e(f"s_memtime s[{sT1}:{sT1+1}]")
        e(f"s_memrealtime s[{sMask}:{sMask+1}]")
        e("s_mov_b64 exec, 1")
        e(f"s_lshl_b32 s{sT0}, s2, 2")
        e(f"s_add_u32 s{sT0}, s{sT0}, s{sWave}")
        e(f"s_lshl_b32 s{sT0}, s{sT0}, 6")
        e(f"s_add_u32 s{sT0}, s{sT0}, 0x40000")
        e("s_waitcnt lgkmcnt(0)")
        e("v_mov_b32 v0, 0")
        lst = [sTS+2, sTS+4, sTS+6, sTS+8, sT1]
        for k, r in enumerate(lst):
            e(f"s_sub_u32 s{sRn}, s{r}, s{sTS}")
            e(f"v_mov_b32 v1, s{sRn}")
            e(f"buffer_store_dword v1, v0, {srd(sWS)}, s{sT0} offen offset:{4*k}")
        e(f"s_sub_u32 s{sRn}, s{sMask}, s{sTS+10}")
        e(f"v_mov_b32 v1, s{sRn}")
        e(f"buffer_store_dword v1, v0, {srd(sWS)}, s{sT0} offen offset:20")
        e(f"v_mov_b32 v1, s{sTS+10}")
        e(f"buffer_store_dword v1, v0, {srd(sWS)}, s{sT0} offen offset:24")
        e(f"v_mov_b32 v1, s{sT3}")
        e(f"buffer_store_dword v1, v0, {srd(sWS)}, s{sT0} offen offset:28")
        if o.stamp >= 2:
            e("v_writelane_b32 v252, s100, 12")
            e("s_mov_b64 exec, 0xffff")
            e(f"v_subrev_u32 v252, s{sTS}, v252")
            e(f"v_lshlrev_b32 v0, 2, v{vLane}")
            e(f"s_add_u32 s{sT0}, s{sT0}, 0x10000")
            e(f"buffer_store_dword v252, v0, {srd(sWS)}, s{sT0} offen")
    e("L_end:")
    e("s_endpgm")
    e('.section .rodata,"a"')
    e(".p2align 6")
    e(f".amdhsa_kernel {o.name}_kernel")
    e(f"  .amdhsa_next_free_vgpr {NV}")
    e("  .amdhsa_next_free_sgpr 102")
    e(f"  .amdhsa_accum_offset {NV}")
    e("  .amdhsa_group_segment_fixed_size 0")
    e("  .amdhsa_kernarg_size 64")
    e("  .amdhsa_user_sgpr_count 2")
    e("  .amdhsa_user_sgpr_kernarg_segment_ptr 1")
    e("  .amdhsa_system_sgpr_workgroup_id_x 1")
    e(".end_amdhsa_kernel")
    return "\n".join(x for x in out if x is not None) + "\n"

if __name__ == "__main__":
    o = Opt()
    path = sys.argv[1]
    for a in sys.argv[2:]:
        k, v = a.split("=")
        assert hasattr(o, k), k
        setattr(o, k, int(v))
    open(path, "w").write(gen(o))
```

```python
import sys, struct
def f2u(x): return struct.unpack('<I', struct.pack('<f', x))[0]

NAME = "standalone__self_sup_conv_stem_hubert__speech"
HDR = """; Kernarg layout for this problem (64 bytes, ptrs only, base s[0:1]):
"""

class Opt:
    stamp = 0
    xnt = 0
    tnt = 0
    wnt = 0
    hnt = 0
    lo = 0
    b1 = 1
    w1 = 1
    l0 = 5
    lpi = 4
    ppi = 3
    p0 = 12
    dbg = 0
    inv = 0
    dsc1 = 1
    prio = 0
    osc1 = 0
    ont = 0
    warm = 0
    name = NAME

L = 7985
TS = 250
XBYTES = 2*16000*256*2
WBYTES = 31*256*256*2
OBYTES = 2*L*256*2
XBASE = 65536
XBUF = 34816
LDS_BYTES = XBASE + 2*XBUF
WS_HS = 0x100000
WS_S = 0x400000
SIMG = 34816
WS_BYTES = 0x1000000

S1 = 0
S2 = 64
FR = 128
WF = 220
WF2 = 248
vAlo, vAhi, vWrd = 228, 229, 230
PB, PG, PE = 232, 234, 236
vLane, vI, vG, vT0, vT1, vT2, vT3 = 238, 239, 240, 241, 242, 243, 244
vOut, vPoll, vZero = 245, 246, 247
NV = 256
hX0, hX1, hW0, hW1, hLin, hA0, hA1, hB = 8, 9, 10, 11, 12, 13, 14, 15
hT = 16
hD = 32
sX, sW, sO, sWS, sDB, sB, sGA, sBE = 4, 8, 12, 16, 20, 24, 28, 32
sWave, sB_, sTile, sChg, sBt, sRho, sH, sIt, sHook = 36, 37, 38, 39, 40, 41, 42, 43, 44
sT0, sT1, sT2, sT3 = 45, 46, 47, 48
sRec = 49
sWm0, sXm0, sWoff, sWstr, sWb0, sWb1, sXb0, sXb1, sWinc, sXinc, sXoff, sXstr = range(50, 62)
sKc, sP, sSimg, sMsk, sHs0, sHs1 = 62, 63, 64, 65, 66, 67
sXs, sWsrc = 72, 76
sMask = 56
sSign, sO1, sO2, sO3, sRn = 84, 85, 86, 87, 54
sTS = 88

def F(u): return f"v[{FR+4*u}:{FR+4*u+3}]"
def A(s): return f"v[{S1+4*s}:{S1+4*s+3}]"
def Wr(k): return WF2 if k == 2 else WF+4*k
def Wf(k): return f"v[{Wr(k)}:{Wr(k)+3}]"
def srd(r): return f"s[{r}:{r+3}]"
def P(r): return f"v[{r}:{r+1}]"
def Q4(r): return f"v[{r}:{r+3}]"

def NT(x): return ' nt' if x else ''
def gen(o):
    out = []
    e = out.append
    e(HDR + f"; @launch grid=(256,1,1) block=(512,1,1) lds={LDS_BYTES}")
    e('.amdgcn_target "amdgcn-amd-amdhsa--gfx950"')
    e(".text")
    e(f".globl {o.name}_kernel")
    e(".p2align 8")
    e(f".type {o.name}_kernel,@function")
    e(f"{o.name}_kernel:")
    e("s_cmp_ge_u32 s2, 256")
    e("s_cbranch_scc1 L_end")
    def stamp(k):
        if o.stamp: e(f"s_memtime s[{sTS+2*k}:{sTS+2*k+1}]")
    if o.stamp: e(f"s_memrealtime s[{sTS+10}:{sTS+11}]")
    stamp(0)
    e(f"s_load_dwordx4 s[{sXs}:{sXs+3}], s[0:1], 0")
    e(f"v_lshrrev_b32 v1, 6, v0")
    e(f"v_and_b32 v{vLane}, 63, v0")
    e(f"v_readfirstlane_b32 s{sWave}, v1")
    e(f"s_bfe_u32 s{sB_}, s2, 0x10002")
    e(f"s_and_b32 s{sTile}, s2, 3")
    e(f"s_lshl_b32 s{sTile}, s{sTile}, 2")
    e(f"s_bfe_u32 s{sT0}, s2, 0x20003")
    e(f"s_or_b32 s{sTile}, s{sTile}, s{sT0}")
    e(f"s_lshr_b32 s{sChg}, s2, 5")
    e(f"s_load_dwordx2 s[{sWS}:{sWS+1}], s[0:1], 56")
    e(f"s_load_dwordx2 s[{sDB}:{sDB+1}], s[0:1], 48")
    e(f"s_cmp_lt_u32 s{sWave}, 4")
    e("s_cbranch_scc1 L_compute")
    e(f"s_and_b32 s{sRho}, s{sWave}, 1")
    e(f"s_mul_i32 s{sT0}, s{sB_}, {16000*512}")
    e(f"s_mul_i32 s{sT1}, s{sTile}, {4*TS*512}")
    e(f"s_add_u32 s{sT0}, s{sT0}, s{sT1}")
    e(f"s_cmp_ge_u32 s{sWave}, 6")
    e("s_cbranch_scc1 L_trans")
    e(f"s_lshl_b32 s{sT1}, s{sRho}, 14")
    e(f"s_add_u32 s{sT0}, s{sT0}, s{sT1}")
    e(f"v_lshrrev_b32 v1, 3, v{vLane}")
    e(f"v_and_b32 v2, 7, v{vLane}")
    e(f"v_lshlrev_b32 v2, 4, v2")
    e(f"v_lshl_add_u32 v4, v1, 11, v2")
    e(f"v_add_u32 v{hX0}, s{sT0}, v4")
    e(f"v_xor_b32 v{hX1}, 32, v{hX0}")
    e(f"v_lshrrev_b32 v1, 2, v{vLane}")
    e(f"v_and_b32 v3, 48, v2")
    e(f"v_and_b32 v5, 32, v{vLane}")
    e(f"v_xor_b32 v5, v5, v3")
    e(f"v_lshl_add_u32 v5, v1, 9, v5")
    e(f"s_lshl_b32 s{sKc}, s{sChg}, 6")
    e(f"v_add_u32 v{hW0}, s{sKc}, v5")
    e(f"v_add_u32 v{hW1}, 8192, v{hW0}")
    e(f"s_lshl_b32 s{sWm0}, s{sRho}, 11")
    e(f"s_lshl_b32 s{sXm0}, s{sRho}, 10")
    e(f"s_add_u32 s{sXm0}, s{sXm0}, {XBASE}")
    e(f"s_mov_b32 s{sXb0}, 0")
    e(f"s_lshl_b32 s{sWb0}, s{sRho}, 14")
    e(f"s_mov_b32 s{sXstr}, 32768")
    e(f"s_mov_b32 s{sWstr}, 524288")
    def mk_srds():
        e("s_waitcnt lgkmcnt(0)")
        e(f"s_mov_b32 s{sWsrc}, s{sXs+2}")
        e(f"s_and_b32 s{sWsrc+1}, s{sXs+3}, 0xffff")
        e(f"s_mov_b32 s{sWsrc+2}, {WBYTES}")
        e(f"s_mov_b32 s{sWsrc+3}, 0x00020000")
        e(f"s_and_b32 s{sXs+1}, s{sXs+1}, 0xffff")
        e(f"s_mov_b32 s{sXs+2}, {XBYTES}")
        e(f"s_mov_b32 s{sXs+3}, 0x00020000")
    mk_srds()
    if o.stamp: e("s_memtime s[90:91]")
    log = []
    lab = [0]
    pro = [1]
    def xdma(par, tag, fl=""):
        for k in range(17):
            if k == 16:
                lab[0] += 1
                e(f"s_cmp_lg_u32 s{sRho}, 0")
                e(f"s_cbranch_scc1 L_sk{lab[0]}")
            e(f"s_add_u32 m0, s{sXm0}, {par*XBUF + k*2112}")
            if k == 0: e(f"s_mov_b32 s{sXoff}, s{sXb1 if par else sXb0}")
            else: e(f"s_add_u32 s{sXoff}, s{sXoff}, s{sXstr}")
            e(f"buffer_load_dwordx4 v{hX1 if (k >> 2) & 1 else hX0}, {srd(sXs)}, s{sXoff} offen{fl or NT(o.xnt == 1 or (o.xnt == 2 and pro[0]))} lds")
            log.append((tag, k < 16))
        e(f"L_sk{lab[0]}:")
    def wdma(par, i0, tag, fl=""):
        for i in range(i0, i0+4):
            e(f"s_add_u32 m0, s{sWm0}, {(par*8 + i)*4096}")
            if i == 0: e(f"s_mov_b32 s{sWoff}, s{sWb1 if par else sWb0}")
            else: e(f"s_add_u32 s{sWoff}, s{sWoff}, s{sWstr}")
            e(f"buffer_load_dwordx4 v{hW0}, {srd(sWsrc)}, s{sWoff} offen{fl or NT(o.wnt)} lds")
            e(f"s_add_u32 m0, m0, 1024")
            e("s_nop 0")
            e(f"buffer_load_dwordx4 v{hW1}, {srd(sWsrc)}, s{sWoff} offen{fl or NT(o.wnt)} lds")
            log.extend([(tag, True)]*2)
    def wait_for(tags):
        idx = [i for i, (t, c) in enumerate(log) if t in tags]
        for t in tags: assert any(t == x for x, _ in log), t
        n = sum(1 for t, c in log[max(idx)+1:] if c)
        assert n <= 63
        return n
    def adv():
        e(f"s_add_u32 s{sWb0}, s{sWb0}, s{sWinc}"); e(f"s_add_u32 s{sWb1}, s{sWb1}, s{sWinc}")
        e(f"s_add_u32 s{sXb0}, s{sXb0}, s{sXinc}"); e(f"s_add_u32 s{sXb1}, s{sXb1}, s{sXinc}")
    xdma(0, ("x", 0)); wdma(0, 0, ("w", 0, 0))
    if o.stamp: e("s_memtime s[92:93]")
    if o.b1 == 0: e("s_barrier")
    e(f"s_add_u32 s{sXb1}, s{sXb0}, 512")
    e(f"s_add_u32 s{sWb1}, s{sWb0}, 131072")
    e(f"s_mov_b32 s{sWinc}, 32768")
    e(f"s_mov_b32 s{sXinc}, 128")
    xdma(1, ("x", 1)); wdma(0, 4, ("w", 0, 1))
    if o.b1 == 1: e("s_barrier")
    wdma(1, 0, ("w", 1, 0))
    if o.b1 == 2: e("s_barrier")
    if o.w1: wdma(1, 4, ("w", 1, 1))
    if o.b1 == 3: e("s_barrier")
    e(f"s_waitcnt vmcnt({wait_for([('x', 0), ('w', 0, 0)])})")
    if o.stamp: e("s_memtime s[94:95]")
    e("s_barrier")
    if not o.w1: wdma(1, 4, ("w", 1, 1))
    adv()
    pro[0] = 0
    def interval(c, j, fl):
        par = c & 1
        need = [("x", c+1), ("w", c, 1)] if j == 3 else [("w", c+1, 0)]
        n = wait_for(need)
        e(f"s_waitcnt vmcnt({n})")
        e("s_barrier")
        if j == 3:
            xdma(par, ("x", c+2), fl); wdma(par, 0, ("w", c+2, 0), fl)
        else:
            wdma(par, 4, ("w", c+2, 1), fl)
        return n
    e(f"s_mov_b32 s{sIt}, 0")
    e("L_dloop1:")
    e(f"s_cmp_lg_u32 s{sIt}, 3")
    e("s_cbranch_scc1 L_dl1")
    for r in (sWb0, sWb1): e(f"s_add_u32 s{r}, s{r}, 131072")
    for r in (sXb0, sXb1): e(f"s_add_u32 s{r}, s{r}, 512")
    e("L_dl1:")
    n1 = [interval(c, j, "") for c in (0, 1) for j in (3, 7)]
    assert n1 == [16, 32, 16, 32], n1
    adv()
    e(f"s_add_u32 s{sIt}, s{sIt}, 1")
    e(f"s_cmp_lt_u32 s{sIt}, 7")
    e("s_cbranch_scc1 L_dloop1")
    e(f"s_mov_b32 s{sXs}, s{sWS}")
    e(f"s_and_b32 s{sXs+1}, s{sWS+1}, 0xffff")
    e(f"s_mov_b32 s{sXs+2}, {WS_BYTES}")
    for q in range(3): e(f"s_mov_b32 s{sWsrc+q}, s{sXs+q}")
    e(f"v_lshlrev_b32 v{hW0}, 4, v{vLane}")
    e(f"s_lshl_b32 s{sT0}, s{sRho}, 10")
    e(f"v_add_u32 v{hX0}, s{sT0}, v{hW0}")
    e(f"v_add_u32 v{hX1}, s{sT0}, v{hW0}")
    e(f"v_add_u32 v{hW1}, 1024, v{hW0}")
    e(f"s_lshl_b32 s{sT1}, s{sB_}, 4")
    e(f"s_or_b32 s{sT1}, s{sT1}, s{sTile}")
    e(f"s_mul_i32 s{sXb0}, s{sT1}, {8*SIMG}")
    e(f"s_add_u32 s{sXb0}, s{sXb0}, {WS_S}")
    e(f"s_add_u32 s{sXb1}, s{sXb0}, {4*SIMG}")
    e(f"s_mov_b32 s{sXinc}, {SIMG}")
    e(f"s_mov_b32 s{sXstr}, 2048")
    e(f"s_lshl_b32 s{sWb0}, s{sChg}, 18")
    e(f"s_lshl_b32 s{sT0}, s{sRho}, 17")
    e(f"s_add_u32 s{sWb0}, s{sWb0}, s{sT0}")
    e(f"s_add_u32 s{sWb0}, s{sWb0}, {WS_HS}")
    e(f"s_add_u32 s{sWb1}, s{sWb0}, 16384")
    e(f"s_mov_b32 s{sWinc}, 32768")
    e(f"s_mov_b32 s{sWstr}, 2048")
    e("L_dloop2:")
    n2 = [interval(c, j, " sc1") for c in (2, 3) for j in (3, 7)]
    assert n2 == n1
    adv()
    e(f"s_add_u32 s{sIt}, s{sIt}, 1")
    e(f"s_cmp_lt_u32 s{sIt}, 11")
    e("s_cbranch_scc1 L_dloop2")
    for n in (16, 8, 0):
        e(f"s_waitcnt vmcnt({n})")
        e("s_barrier")
    if o.stamp:
        e(f"s_lshl_b32 s{sT0}, s2, 2")
        e(f"s_add_u32 s{sT0}, s{sT0}, s{sRho}")
        e(f"s_lshl_b32 s{sT0}, s{sT0}, 6")
        e(f"s_add_u32 s{sT0}, s{sT0}, 0x40020")
        e("s_mov_b64 exec, 1")
        e("v_mov_b32 v0, 0")
        for k in range(3):
            e(f"s_sub_u32 s{sT1}, s{90+2*k}, s{sTS}")
            e(f"v_mov_b32 v1, s{sT1}")
            e(f"buffer_store_dword v1, v0, {srd(sXs)}, s{sT0} offen offset:{4*k}")
    e("s_endpgm")
    e("L_trans:")
    log = []
    e(f"s_lshl_b32 s{sT1}, s{sRho}, 9")
    e(f"s_add_u32 s{sT0}, s{sT0}, s{sT1}")
    e(f"s_add_u32 s{sT0}, s{sT0}, 1024")
    e(f"v_lshrrev_b32 v1, 3, v{vLane}")
    e(f"v_and_b32 v2, 7, v{vLane}")
    e(f"v_lshlrev_b32 v2, 4, v2")
    e(f"v_lshl_add_u32 v2, v1, 11, v2")
    e(f"v_add_u32 v{hA0}, s{sT0}, v2")
    e(f"v_lshrrev_b32 v1, 5, v{vLane}")
    e(f"v_lshlrev_b32 v{hLin}, 4, v{vLane}")
    def urg(u):
        e(f"s_add_u32 s{sT1}, s{sChg}, {8*u}")
        e(f"s_mul_i32 s{sT2}, s{sT1}, 241")
        e(f"s_lshr_b32 s{sT2}, s{sT2}, 13")
        e(f"s_mul_i32 s{sT3}, s{sT2}, 34")
        e(f"s_sub_u32 s{sT1}, s{sT1}, s{sT3}")
    e(f"s_lshr_b32 s{sT2}, s2, 5")
    e(f"s_lshl_b32 s{sHs0}, s{sT2}, 19")
    e(f"s_lshl_b32 s{sHs1}, s{sT2}, 11")
    e(f"s_bfe_u32 s{sT2}, s2, 0x10004")
    e(f"s_lshl_b32 s{sT3}, s{sT2}, 17")
    e(f"s_add_u32 s{sHs0}, s{sHs0}, s{sT3}")
    e(f"s_lshl_b32 s{sT3}, s{sT2}, 14")
    e(f"s_add_u32 s{sHs1}, s{sHs1}, s{sT3}")
    e(f"s_and_b32 s{sT2}, s2, 15")
    e(f"s_lshl_b32 s{sT2}, s{sT2}, 13")
    e(f"s_add_u32 s{sHs0}, s{sHs0}, s{sT2}")
    e(f"s_lshl_b32 s{sT2}, s{sRho}, 12")
    e(f"s_add_u32 s{sHs0}, s{sHs0}, s{sT2}")
    mk_srds()
    units = [("s", u) for u in range(17)] + [("h", k) for k in range(4)]
    NU = len(units)
    hl = [(n, h) for n in range(17, 21) for h in (0, 1)]
    loads = [(n, 0) for n in range(4, 13)] + hl + [(n, 0) for n in range(13, 17)] + [(n, 1) for n in range(17)] + [(n, 0) for n in range(4)]
    if o.lo == 1: loads = [(n, 0) for n in range(4, 17)] + hl + [(n, 1) for n in range(17)] + [(n, 0) for n in range(4)]
    if o.lo == 2: loads = [(n, 0) for n in range(4, 9)] + hl + [(n, 0) for n in range(9, 17)] + [(n, 1) for n in range(17)] + [(n, 0) for n in range(4)]
    order = list(range(17, 21)) + list(range(4, 17)) + list(range(4))
    def uload(n, h):
        kind, k = units[n]; d = hD + 8*n + 4*h
        if kind == "s":
            urg(k)
            e(f"s_lshl_b32 s{sT0}, s{sT1}, 14")
            e(f"s_lshl_b32 s{sT2}, s{sT2}, 7")
            e(f"s_add_u32 s{sT0}, s{sT0}, s{sT2}")
            if h == 0: e(f"s_add_u32 s{sT0}, s{sT0}, 1024")
            e(f"buffer_load_dwordx4 {Q4(d)}, v{hA0}, {srd(sXs)}, s{sT0} offen{NT(h == 0 and 4 <= k < 4 + o.tnt)}")
        else:
            e(f"s_add_u32 s{sT0}, s{sHs0}, {k*1024 + h*262144}")
            e(f"buffer_load_dwordx4 {Q4(d)}, v{hLin}, {srd(sWsrc)}, s{sT0} offen{NT(o.hnt)}")
        log.append((("ul", n, h), True))
    def uproc(n):
        kind, k = units[n]; d = hD + 8*n; t = hT; ob = hT + 4 + 4*(n & 1)
        e(f"s_waitcnt vmcnt({wait_for([('ul', n, 0), ('ul', n, 1)])})")
        ng = "-" if kind == "h" else ""
        for q in range(4):
            a, b = d+q, d+4+q
            e(f"v_lshlrev_b32 v{t}, 16, v{a}")
            e(f"v_lshlrev_b32 v{t+1}, 16, v{b}")
            e(f"v_and_b32 v{t+2}, s{sMsk}, v{a}")
            e(f"v_and_b32 v{t+3}, s{sMsk}, v{b}")
            e(f"v_add_f32 v{t}, {ng}v{t}, {ng}v{t+1}")
            e(f"v_add_f32 v{t+2}, {ng}v{t+2}, {ng}v{t+3}")
            e(f"v_cvt_pk_bf16_f32 v{ob+q}, v{t}, v{t+2}")
        if kind == "s":
            urg(k)
            e(f"s_mul_i32 s{sT0}, s{sT2}, {SIMG}")
            e(f"s_add_u32 s{sT0}, s{sT0}, s{sSimg}")
            e(f"s_and_b32 s{sT2}, s{sT1}, 8")
            e(f"s_lshl_b32 s{sT2}, s{sT2}, 2")
            e(f"v_xor_b32 v{hB}, s{sT2}, v{hLin}")
            e(f"s_lshl_b32 s{sT1}, s{sT1}, 10")
            e(f"s_add_u32 s{sT0}, s{sT0}, s{sT1}")
            e(f"buffer_store_dwordx4 {Q4(ob)}, v{hB}, {srd(sWS)}, s{sT0} offen sc1")
        else:
            e(f"s_add_u32 s{sT0}, s{sHs1}, {k*128}")
            e(f"buffer_store_dwordx4 {Q4(ob)}, v{hX1}, {srd(sWS)}, s{sT0} offen sc1")
        log.append((("us", n), True))
    e("s_barrier")
    li = 0
    def some_loads(cnt):
        nonlocal li
        for n, h in loads[li:li+cnt]: uload(n, h)
        li = min(len(loads), li+cnt)
    some_loads(o.l0)
    for r, n in ((sWS, WS_BYTES), (sDB, 256)):
        e(f"s_and_b32 s{r+1}, s{r+1}, 0xffff")
        e(f"s_mov_b32 s{r+2}, {n}")
        e(f"s_mov_b32 s{r+3}, 0x00020000")
    e(f"s_lshl_b32 s{sBt}, s{sB_}, 4")
    e(f"s_or_b32 s{sBt}, s{sBt}, s{sTile}")
    e(f"s_mov_b32 s{sMsk}, 0xffff0000")
    e(f"s_lshl_b32 s{sT1}, s{sBt}, 1")
    e(f"s_add_u32 s{sT1}, s{sT1}, s{sRho}")
    e(f"s_mul_i32 s{sSimg}, s{sT1}, {4*SIMG}")
    e(f"s_add_u32 s{sSimg}, s{sSimg}, {WS_S}")
    e(f"v_bfe_u32 v2, v{vLane}, 2, 3")
    e(f"v_lshlrev_b32 v2, 18, v2")
    e(f"v_lshl_add_u32 v2, v1, 6, v2")
    e(f"v_and_b32 v3, 3, v{vLane}")
    e(f"v_lshl_add_u32 v2, v3, 4, v2")
    e(f"s_lshl_b32 s{sT1}, s{sRho}, 5")
    e(f"v_xor_b32 v{hX1}, s{sT1}, v2")
    e(f"s_bfe_u32 s{sT2}, s2, 0x10001")
    e(f"s_lshl_b32 s{sT2}, s{sT2}, 17")
    e(f"s_add_u32 s{sHs1}, s{sHs1}, s{sT2}")
    e(f"s_bfe_u32 s{sT2}, s2, 0x20002")
    e(f"s_lshl_b32 s{sT2}, s{sT2}, 15")
    e(f"s_add_u32 s{sHs1}, s{sHs1}, s{sT2}")
    e(f"s_and_b32 s{sT2}, s2, 1")
    e(f"s_lshl_b32 s{sT2}, s{sT2}, 10")
    e(f"s_add_u32 s{sHs1}, s{sHs1}, s{sT2}")
    e(f"s_lshl_b32 s{sT2}, s{sRho}, 9")
    e(f"s_add_u32 s{sHs1}, s{sHs1}, s{sT2}")
    e(f"s_add_u32 s{sHs1}, s{sHs1}, {WS_HS}")
    e(f"s_lshl_b32 s{sRec}, s{sB_}, 3")
    e(f"s_or_b32 s{sRec}, s{sRec}, s{sChg}")
    e(f"s_lshl_b32 s{sRec}, s{sRec}, 13")
    e(f"s_lshl_b32 s{sT2}, s{sRho}, 4")
    e(f"s_add_u32 s{sT2}, s{sT2}, s{sTile}")
    e(f"s_lshl_b32 s{sT2}, s{sT2}, 7")
    e(f"s_add_u32 s{sT2}, s{sT2}, s{sRec}")
    e(f"v_and_b32 v6, 31, v{vLane}")
    e(f"v_lshlrev_b32 v6, 2, v6")
    e(f"v_lshl_add_u32 v6, v1, 12, v6")
    e(f"v_mov_b32 v7, -1")
    e("s_barrier")
    e(f"buffer_store_dword v7, v6, {srd(sWS)}, s{sT2} offen sc1")
    log.append(("rst", True))
    m = -1
    pi = 0
    while pi < NU:
        some_loads(o.lpi)
        if m + 1 >= o.p0:
            assert li == len(loads)
            for n in order[pi:pi+o.ppi]: uproc(n)
            pi += o.ppi
        e("s_barrier"); m += 1
    for _ in range(2):
        e("s_barrier"); m += 1
    e("s_waitcnt vmcnt(0)")
    e("s_barrier"); m += 1
    e(f"s_cmp_lg_u32 s{sWave}, 6")
    e("s_cbranch_scc1 L_end2")
    e("s_mov_b64 exec, 1")
    e("v_mov_b32 v6, 0")
    e("v_mov_b32 v7, 1")
    e(f"buffer_atomic_add v7, v6, {srd(sDB)}, 0 offen sc1")
    lastm = 25
    assert m < lastm
    e(f"s_mov_b32 s{sIt}, {m}")
    e("L_tw:")
    e("s_barrier")
    e(f"s_add_u32 s{sIt}, s{sIt}, 1")
    e(f"s_cmp_lt_u32 s{sIt}, {lastm}")
    e("s_cbranch_scc1 L_tw")
    e(f"buffer_load_dword v7, v6, {srd(sDB)}, 0 offen sc1")
    e("s_barrier")
    e("s_barrier")
    e(f"s_mov_b32 s{sT3}, 0")
    e("L_tp:")
    e("s_waitcnt vmcnt(0)")
    e(f"v_readfirstlane_b32 s{sT2}, v7")
    e(f"s_add_u32 s{sT3}, s{sT3}, 1")
    e(f"s_cmp_ge_u32 s{sT2}, 256")
    e("s_cbranch_scc1 L_tq")
    e(f"s_cmp_ge_u32 s{sT3}, 0x20000")
    e("s_cbranch_scc1 L_tq")
    e(f"buffer_load_dword v7, v6, {srd(sDB)}, 0 offen sc1")
    e("s_branch L_tp")
    e("L_tq:")
    e("s_barrier")
    e("L_end2:")
    e("s_endpgm")
    e(".p2align 6")
    e("L_compute:")
    e(f"s_bfe_u32 s{sRho}, s{sWave}, 0x10001")
    e(f"s_and_b32 s{sH}, s{sWave}, 1")
    e(f"s_lshl_b32 s{sRec}, s{sB_}, 3")
    e(f"s_or_b32 s{sRec}, s{sRec}, s{sChg}")
    e(f"s_lshl_b32 s{sRec}, s{sRec}, 1")
    e(f"s_or_b32 s{sRec}, s{sRec}, s{sH}")
    e(f"s_lshl_b32 s{sRec}, s{sRec}, 12")
    if o.prio: e(f"s_setprio {o.prio}")
    e(f"s_load_dwordx2 s[{sB}:{sB+1}], s[0:1], 16")
    e(f"s_load_dwordx2 s[{sGA}:{sGA+1}], s[0:1], 24")
    e(f"s_load_dwordx2 s[{sBE}:{sBE+1}], s[0:1], 32")
    e(f"s_load_dwordx2 s[{sO}:{sO+1}], s[0:1], 40")
    for r, n in ((sO, OBYTES), (sWS, WS_BYTES), (sDB, 256), (sB, 512), (sGA, 512), (sBE, 512)):
        e(f"s_mov_b32 s{r+2}, {n}")
        e(f"s_mov_b32 s{r+3}, 0x00020000")
    e(f"v_and_b32 v{vI}, 15, v{vLane}")
    e(f"v_lshrrev_b32 v{vG}, 4, v{vLane}")
    e(f"s_lshl_b32 s{sT0}, s{sRho}, 6")
    e(f"s_add_u32 s{sT0}, s{sT0}, {XBASE}")
    e(f"s_movk_i32 s{sT1}, 2112")
    for dst, add in ((vAlo, 0), (vAhi, 1)):
        e(f"v_add_u32 v{vT1}, {add}, v{vI}")
        e(f"v_bfe_u32 v{vT0}, v{vT1}, 2, 1")
        e(f"v_lshlrev_b32 v{vT0}, 1, v{vT0}")
        e(f"v_xor_b32 v{vT0}, v{vT0}, v{vG}")
        e(f"v_lshlrev_b32 v{vT0}, 4, v{vT0}")
        e(f"v_mad_u32_u24 v{dst}, v{vT1}, s{sT1}, v{vT0}")
        e(f"v_add_u32 v{dst}, s{sT0}, v{dst}")
    e(f"v_lshrrev_b32 v{vT0}, 2, v{vI}")
    e(f"v_lshl_add_u32 v{vT1}, v{vG}, 3, v{vT0}")
    e(f"v_and_b32 v{vT2}, 1, v{vG}")
    e(f"v_xor_b32 v{vT2}, s{sH}, v{vT2}")
    e(f"v_lshlrev_b32 v{vT2}, 5, v{vT2}")
    e(f"v_lshl_add_u32 v{vT1}, v{vT1}, 6, v{vT2}")
    e(f"v_and_b32 v{vT2}, 3, v{vLane}")
    e(f"v_lshl_add_u32 v{vWrd}, v{vT2}, 3, v{vT1}")
    e(f"s_lshl_b32 s{sT0}, s{sRho}, 11")
    e(f"v_add_u32 v{vWrd}, s{sT0}, v{vWrd}")
    e(f"s_lshl_b32 s{sT0}, s{sChg}, 6")
    e(f"s_lshl_b32 s{sT1}, s{sH}, 5")
    e(f"s_add_u32 s{sT0}, s{sT0}, s{sT1}")
    e(f"v_lshlrev_b32 v{vT0}, 3, v{vG}")
    e(f"v_add_u32 v{vT0}, s{sT0}, v{vT0}")
    e(f"s_mul_i32 s{sT1}, s{sB_}, {L}")
    e(f"s_mul_i32 s{sT2}, s{sTile}, {2*TS}")
    e(f"s_add_u32 s{sT1}, s{sT1}, s{sT2}")
    e(f"s_add_u32 s{sT1}, s{sT1}, s{sRho}")
    e(f"s_lshl_b32 s{sT1}, s{sT1}, 9")
    e(f"v_lshl_add_u32 v{vOut}, v{vI}, 14, v{vT0}")
    e(f"v_add_u32 v{vOut}, s{sT1}, v{vOut}")
    e(f"v_mov_b32 v{vZero}, 0")
    e(f"s_mov_b32 s{sIt}, 0")
    e("s_waitcnt lgkmcnt(0)")
    for r in (sO, sWS, sDB, sB, sGA, sBE): e(f"s_and_b32 s{r+1}, s{r+1}, 0xffff")
    e(f"buffer_load_dwordx2 {P(PB)}, v{vT0}, {srd(sB)}, 0 offen")
    e(f"buffer_load_dwordx2 {P(PG)}, v{vT0}, {srd(sGA)}, 0 offen")
    e(f"buffer_load_dwordx2 {P(PE)}, v{vT0}, {srd(sBE)}, 0 offen")
    e(f"s_sub_u32 s{sT1}, 3, s{sRho}")
    e(f"s_cmp_eq_u32 s{sTile}, 15")
    e(f"s_cselect_b32 s{sT1}, s{sT1}, {TS-240}")
    e(f"s_mov_b32 s{sT2}, {f2u(1.0/243)}")
    e(f"s_cmp_eq_u32 s{sT1}, 2")
    e(f"s_cselect_b32 s{sT2}, {f2u(1.0/242)}, s{sT2}")
    e(f"s_cmp_eq_u32 s{sT1}, {TS-240}")
    e(f"s_cselect_b32 s{sRn}, {f2u(1.0/TS)}, s{sT2}")
    for s in range(2, 16):
        m = sMask + 2*(s-2)
        e(f"s_cmp_gt_u32 s{sT1}, {s}")
        e(f"s_cselect_b32 s{m}, -1, 0x7fff7fff")
        e(f"s_mov_b32 s{m+1}, s{m}")
    e(f"s_cmp_eq_u32 s{sRho}, 0")
    e(f"s_cselect_b32 s{sSign}, 1.0, -1.0")
    e(f"s_movk_i32 s{sO1}, 4096")
    e(f"s_movk_i32 s{sO2}, 8192")
    e(f"s_movk_i32 s{sO3}, 12288")
    e("s_barrier")
    for r in range(0, 128, 2): e(f"v_mov_b64 {P(r)}, 0")
    def xread(u, par):
        return f"ds_read_b128 {F(u)}, v{vAhi if u >= 16 else vAlo} offset:{par*XBUF + (u & 15)*128}"
    def wb(t): return 2 if t == 14 else (t & 1)
    def wread(slot):
        r = Wr(wb(slot))
        return [f"ds_read_b64_tr_b16 v[{r}:{r+1}], v{vWrd} offset:{slot*4096}",
                f"ds_read_b64_tr_b16 v[{r+2}:{r+3}], v{vWrd} offset:{slot*4096+256}"]
    e("s_barrier")
    stamp(1)
    for x in wread(0): e(x)
    for u in range(16): e(xread(u, 0))
    def body(name, acc, short, lim):
        e(".p2align 4")
        e(f"L_loop{name}:")
        if o.stamp >= 2:
            e(f"s_mov_b32 m0, s{sIt}")
            e("s_nop 0")
            e(f"v_writelane_b32 v252, s100, m0")
            e("s_memtime s[100:101]")
        for par in (0, 1):
            nt = 7 if (short and par == 1) else 8
            for j in range(nt):
                t = par*8 + j
                last = j == nt-1
                e(f"s_waitcnt lgkmcnt({9 if j == 0 else 0})")
                if j == 3 or last: e("s_barrier")
                fill = [[] for _ in range(16)]
                fill[0] += wread(((par+1)*8) & 15 if last else t+1)
                np_ = par ^ 1
                if j == 0:
                    fill[1] += [xread(16, par), xread(17, par)]; fill[2] += [xread(18, par)]
                    fill[6] += ["s_waitcnt lgkmcnt(5)"]
                elif j == 1: fill[1] += [xread(19, par), xread(20, par)]
                elif j == 2: fill[1] += [xread(21, par)] + ([xread(22, par)] if nt == 8 else [])
                elif j == 3: fill[1] += [xread(0, np_), xread(1, np_)]; fill[2] += [xread(2, np_)]
                elif not last: fill[1] += [xread(j-1, np_)]
                elif j == 7:
                    fill[1] += [xread(6, np_), xread(7, np_)]
                    fill[2] += [xread(8, np_), xread(9, np_)]
                    for u in range(10, 16): fill[u-7] += [xread(u, np_)]
                else:
                    fill[1] += [xread(5, np_), xread(6, np_)]
                    fill[2] += [xread(7, np_), xread(8, np_)]
                    for u in range(9, 16): fill[u-6] += [xread(u, np_)]
                if last and par == 1:
                    fill[13] += [f"s_add_u32 s{sIt}, s{sIt}, 1"]
                    fill[14] += [f"s_cmp_lt_u32 s{sIt}, {lim}"]
                for s in range(16):
                    e(f"v_mfma_f32_16x16x32_bf16 {Q4(acc+4*s)}, {Wf(wb(t))}, {F(j+s)}, {Q4(acc+4*s)}")
                    for x in fill[s]: e(x)
        e(f"s_cbranch_scc1 L_loop{name}")
    body("A", S2, False, 4)
    body("B", S1, True, 8)
    for r in range(4): e(f"v_mov_b32_dpp v{vT0+r}, v{S2+r} row_shl:1 row_mask:0xf bank_mask:0xf")
    e("s_waitcnt vmcnt(0)")
    for s in range(16):
        if s == 14: e("s_nop 3")
        for h in (0, 2): e(f"v_pk_add_f32 {P(S2+4*s+h)}, {P(S2+4*s+h)}, {P(S1+4*s+h)}")
        if s < 15:
            for h in (0, 2): e(f"v_pk_add_f32 {P(S1+4*s+h)}, {P(S1+4*s+h)}, {P(S2+4*s+4+h)}")
        else:
            for r in range(4): e(f"v_add_f32 v{S1+60+r}, v{S1+60+r}, v{vT0+r}")
    e("s_nop 1")
    body("Q", S1, False, 12)
    stamp(2)
    T = FR
    e(f"s_lshl_b32 s{sT0}, s{sWave}, 14")
    e(f"v_lshlrev_b32 v{vT0}, 4, v{vLane}")
    e(f"v_add_u32 v{vT1}, s{sT0}, v{vT0}")
    e(f"s_xor_b32 s{sT0}, s{sT0}, 0x8000")
    e(f"v_add_u32 v{vT2}, s{sT0}, v{vT0}")
    e(f"s_cmp_lg_u32 s{sRho}, 0")
    e("s_cbranch_scc1 L_x1")
    def zero_invalid():
        for s in range(2, 16):
            m = sMask + 2*(s-2)
            e(f"s_not_b64 exec, s[{m}:{m+1}]")
            e(f"v_mov_b64 {P(S1+4*s)}, 0")
            e(f"v_mov_b64 {P(S1+4*s+2)}, 0")
    def xadd(src):
        for s in range(16):
            if s >= 2: e(f"s_mov_b64 exec, s[{sMask+2*(s-2)}:{sMask+2*(s-2)+1}]")
            else: e("s_mov_b64 exec, -1") if s == 0 else None
            if s % 4 == 0: e(f"s_waitcnt lgkmcnt({12-s})")
            for h in (0, 2): e(f"v_pk_add_f32 {P(S1+4*s+h)}, {P(src+4*s+h)}, {P(T+4*s+h)}")
        e("s_mov_b64 exec, -1")
    for s in range(16): e(f"ds_write_b128 v{vT1}, {Q4(S1+4*s)} offset:{s*1024}")
    e("s_waitcnt lgkmcnt(0)")
    e("s_barrier")
    for s in range(16): e(f"ds_read_b128 {Q4(T+4*s)}, v{vT2} offset:{s*1024}")
    zero_invalid()
    xadd(S2)
    e("s_branch L_x2")
    e("L_x1:")
    for s in range(16): e(f"ds_write_b128 v{vT1}, {Q4(S2+4*s)} offset:{s*1024}")
    e("s_waitcnt lgkmcnt(0)")
    e("s_barrier")
    for s in range(16): e(f"ds_read_b128 {Q4(T+4*s)}, v{vT2} offset:{s*1024}")
    zero_invalid()
    xadd(S1)
    e("L_x2:")
    for k in range(8):
        for h in (0, 2): e(f"v_pk_add_f32 {P(T+4*k+h)}, {P(8*k+h)}, {P(8*k+4+h)}")
    for n in (4, 2, 1):
        for k in range(n):
            for h in (0, 2): e(f"v_pk_add_f32 {P(T+4*k+h)}, {P(T+4*k+h)}, {P(T+4*(k+n)+h)}")
    def dppred(base):
        e("s_nop 1")
        for sh in (8, 4, 2, 1):
            for r in range(4):
                e(f"v_add_f32_dpp v{base+r}, v{base+r}, v{base+r} row_ror:{sh} row_mask:0xf bank_mask:0xf")
    dppred(T)
    ML = T+4
    for r in range(4): e(f"v_mul_f32 v{ML+r}, s{sRn}, v{T+r}")
    Q = T+8
    for s in range(16):
        if s >= 2: e(f"s_mov_b64 exec, s[{sMask+2*(s-2)}:{sMask+2*(s-2)+1}]")
        for h in (0, 2): e(f"v_pk_add_f32 {P(4*s+h)}, {P(4*s+h)}, {P(ML+h)} neg_lo:[0,1] neg_hi:[0,1]")
    e("s_mov_b64 exec, -1")
    for s in range(16):
        for h in (0, 2):
            q = Q + 4*(s & 3) + h
            if s < 4: e(f"v_pk_mul_f32 {P(q)}, {P(4*s+h)}, {P(4*s+h)}")
            else: e(f"v_pk_fma_f32 {P(q)}, {P(4*s+h)}, {P(4*s+h)}, {P(q)}")
    for h in (0, 2):
        e(f"v_pk_add_f32 {P(Q+h)}, {P(Q+h)}, {P(Q+4+h)}")
        e(f"v_pk_add_f32 {P(Q+8+h)}, {P(Q+8+h)}, {P(Q+12+h)}")
    for h in (0, 2): e(f"v_pk_add_f32 {P(Q+h)}, {P(Q+h)}, {P(Q+8+h)}")
    for r in range(4): e(f"v_mul_f32 v{T+r}, s{sSign}, v{T+r}")
    dppred(Q)
    PUB = T+24
    e(f"v_cmp_eq_u32 vcc, 0, v{vI}")
    e(f"s_lshl_b32 s{sT1}, s{sRho}, 4")
    e(f"s_add_u32 s{sT1}, s{sT1}, s{sTile}")
    e(f"s_lshl_b32 s{sT1}, s{sT1}, 7")
    e(f"s_add_u32 s{sT1}, s{sT1}, s{sRec}")
    for r in range(4): e(f"v_cndmask_b32 v{PUB+r}, v{Q+r}, v{T+r}, vcc")
    e(f"v_lshlrev_b32 v{vT1}, 5, v{vG}")
    e(f"v_lshl_add_u32 v{vT2}, v{vI}, 4, v{vT1}")
    e("s_mov_b32 exec_lo, 0x00030003")
    e("s_mov_b32 exec_hi, 0x00030003")
    e(f"buffer_store_dwordx4 {Q4(PUB)}, v{vT2}, {srd(sWS)}, s{sT1} offen sc1")
    e("s_mov_b64 exec, -1")
    stamp(3)
    e(f"v_lshl_add_u32 v{vT2}, v{vI}, 7, v{vT1}")
    RA = T+32
    def recloads():
        e(f"buffer_load_dwordx4 {Q4(RA)}, v{vT2}, {srd(sWS)}, s{sRec} offen sc1")
        e(f"buffer_load_dwordx4 {Q4(RA+8)}, v{vT2}, {srd(sWS)}, s{sRec} offen offset:2048 sc1")
        e(f"buffer_load_dwordx4 {Q4(RA+4)}, v{vT2}, {srd(sWS)}, s{sRec} offen offset:16 sc1")
        e(f"buffer_load_dwordx4 {Q4(RA+12)}, v{vT2}, {srd(sWS)}, s{sRec} offen offset:2064 sc1")
    recloads()
    UB, UG, UE = T+48, T+52, T+56
    for src, dst in ((PB, UB), (PG, UG), (PE, UE)):
        for h in range(2):
            e(f"v_lshlrev_b32 v{dst+2*h}, 16, v{src+h}")
            e(f"v_and_b32 v{dst+2*h+1}, 0xffff0000, v{src+h}")
    vNA, vRA_, vNB, vRB = T+60, T+61, T+62, T+63
    e(f"v_cmp_eq_u32 vcc, 15, v{vI}")
    for d, a, b in ((vNA, TS, 243), (vRA_, 1.0/TS, 1.0/243), (vNB, TS, 242), (vRB, 1.0/TS, 1.0/242)):
        e(f"v_mov_b32 v{d}, {f2u(float(a))}")
        e(f"v_mov_b32 v{vT3}, {f2u(float(b))}")
        e(f"v_cndmask_b32 v{d}, v{d}, v{vT3}, vcc")
    for r in range(4): e(f"v_mul_f32 v{ML+r}, s{sSign}, v{ML+r}")
    c1 = -2.0*1.4426950408889634*0.7978845608028654
    c2 = c1*0.044715
    C1, C2 = T+80, T+82
    for h in range(2):
        e(f"v_mov_b32 v{C1+h}, {f2u(c1)}")
        e(f"v_mov_b32 v{C2+h}, {f2u(c2)}")
    e(f"s_mov_b32 s{sT3}, 0")
    e("L_poll:")
    e("s_waitcnt vmcnt(0)")
    MX = T+64
    e(f"v_max3_u32 v{MX}, v{RA}, v{RA+1}, v{RA+2}")
    e(f"v_max3_u32 v{MX+1}, v{RA+3}, v{RA+4}, v{RA+5}")
    e(f"v_max3_u32 v{MX+2}, v{RA+6}, v{RA+7}, v{RA+8}")
    e(f"v_max3_u32 v{MX+3}, v{RA+9}, v{RA+10}, v{RA+11}")
    e(f"v_max3_u32 v{MX}, v{MX}, v{RA+12}, v{RA+13}")
    e(f"v_max3_u32 v{MX+1}, v{MX+1}, v{RA+14}, v{RA+15}")
    e(f"v_max3_u32 v{MX}, v{MX}, v{MX+2}, v{MX+3}")
    e(f"v_max_u32 v{MX}, v{MX}, v{MX+1}")
    e(f"v_cmp_eq_u32 vcc, -1, v{MX}")
    e(f"s_add_u32 s{sT3}, s{sT3}, 1")
    e("s_nop 0")
    e("s_cbranch_vccz L_pollx")
    e(f"s_cmp_ge_u32 s{sT3}, 0x20000")
    e("s_cbranch_scc1 L_pollx")
    recloads()
    e("s_branch L_poll")
    e("L_pollx:")
    MU = T+64
    for r in range(4): e(f"v_add_f32 v{MU+r}, v{RA+r}, v{RA+8+r}")
    dppred(MU)
    e(f"s_mov_b32 s{sT1}, {f2u(1.0/L)}")
    for r in range(4): e(f"v_mul_f32 v{MU+r}, s{sT1}, v{MU+r}")
    for r in range(4):
        e(f"v_fma_f32 v{RA+r}, v{RA+r}, v{vRA_}, -v{MU+r}")
        e(f"v_fma_f32 v{RA+8+r}, v{RA+8+r}, v{vRB}, -v{MU+r}")
    for r in range(4):
        e(f"v_mul_f32 v{RA+r}, v{RA+r}, v{RA+r}")
        e(f"v_mul_f32 v{RA+8+r}, v{RA+8+r}, v{RA+8+r}")
    for r in range(4):
        e(f"v_fma_f32 v{RA+4+r}, v{RA+r}, v{vNA}, v{RA+4+r}")
        e(f"v_fma_f32 v{RA+12+r}, v{RA+8+r}, v{vNB}, v{RA+12+r}")
    VAR = T+68
    for r in range(4): e(f"v_add_f32 v{VAR+r}, v{RA+4+r}, v{RA+12+r}")
    dppred(VAR)
    e(f"v_mov_b32 v{vT1}, {f2u(1e-5)}")
    for r in range(4): e(f"v_fma_f32 v{VAR+r}, v{VAR+r}, s{sT1}, v{vT1}")
    for r in range(4): e(f"v_rsq_f32 v{VAR+r}, v{VAR+r}")
    SC, SH = T+72, T+76
    for r in range(4): e(f"v_add_f32 v{MU+r}, v{MU+r}, v{UB+r}")
    for r in range(4): e(f"v_add_f32 v{ML+r}, v{ML+r}, v{UB+r}")
    for r in range(4): e(f"v_mul_f32 v{SC+r}, v{VAR+r}, v{UG+r}")
    for r in range(4): e(f"v_sub_f32 v{ML+r}, v{ML+r}, v{MU+r}")
    for r in range(4): e(f"v_fma_f32 v{SH+r}, v{ML+r}, v{SC+r}, v{UE+r}")
    for r in range(4): e(f"v_mul_f32 v{SC+r}, s{sSign}, v{SC+r}")
    stamp(4)
    Z = S2
    oflags = (" sc1" if o.osc1 else "") + (" nt" if o.ont else "")
    for s in range(16):
        zb = Z + 8*(s & 3)
        if s >= 2: e(f"s_mov_b64 exec, s[{sMask+2*(s-2)}:{sMask+2*(s-2)+1}]")
        for h in (0, 2): e(f"v_pk_fma_f32 {P(4*s+h)}, {P(4*s+h)}, {P(SC+h)}, {P(SH+h)}")
        for h in (0, 2): e(f"v_pk_mul_f32 {P(zb+h)}, {P(4*s+h)}, {P(4*s+h)}")
        for h in (0, 2): e(f"v_pk_fma_f32 {P(zb+h)}, {P(zb+h)}, {P(C2)}, {P(C1)}")
        for h in (0, 2): e(f"v_pk_mul_f32 {P(zb+h)}, {P(zb+h)}, {P(4*s+h)}")
        for r in range(4): e(f"v_exp_f32 v{zb+r}, v{zb+r}")
        for h in (0, 2): e(f"v_pk_add_f32 {P(zb+h)}, {P(zb+h)}, 1.0 op_sel_hi:[1,0]")
        for r in range(4): e(f"v_rcp_f32 v{zb+r}, v{zb+r}")
        for h in (0, 2): e(f"v_pk_mul_f32 {P(zb+h)}, {P(zb+h)}, {P(4*s+h)}")
        e(f"v_cvt_pk_bf16_f32 v{zb+4}, v{zb}, v{zb+1}")
        e(f"v_cvt_pk_bf16_f32 v{zb+5}, v{zb+2}, v{zb+3}")
        so = ("0", f"s{sO1}", f"s{sO2}", f"s{sO3}")[s >> 2]
        e(f"buffer_store_dwordx2 v[{zb+4}:{zb+5}], v{vOut}, {srd(sO)}, {so} offen offset:{(s & 3)*1024}{oflags}")
    if o.stamp:
        e("s_waitcnt vmcnt(0)")
        e(f"s_memtime s[{sT1}:{sT1+1}]")
        e(f"s_memrealtime s[{sMask}:{sMask+1}]")
        e("s_mov_b64 exec, 1")
        e(f"s_lshl_b32 s{sT0}, s2, 2")
        e(f"s_add_u32 s{sT0}, s{sT0}, s{sWave}")
        e(f"s_lshl_b32 s{sT0}, s{sT0}, 6")
        e(f"s_add_u32 s{sT0}, s{sT0}, 0x40000")
        e("s_waitcnt lgkmcnt(0)")
        e("v_mov_b32 v0, 0")
        lst = [sTS+2, sTS+4, sTS+6, sTS+8, sT1]
        for k, r in enumerate(lst):
            e(f"s_sub_u32 s{sRn}, s{r}, s{sTS}")
            e(f"v_mov_b32 v1, s{sRn}")
            e(f"buffer_store_dword v1, v0, {srd(sWS)}, s{sT0} offen offset:{4*k}")
        e(f"s_sub_u32 s{sRn}, s{sMask}, s{sTS+10}")
        e(f"v_mov_b32 v1, s{sRn}")
        e(f"buffer_store_dword v1, v0, {srd(sWS)}, s{sT0} offen offset:20")
        e(f"v_mov_b32 v1, s{sTS+10}")
        e(f"buffer_store_dword v1, v0, {srd(sWS)}, s{sT0} offen offset:24")
        e(f"v_mov_b32 v1, s{sT3}")
        e(f"buffer_store_dword v1, v0, {srd(sWS)}, s{sT0} offen offset:28")
        if o.stamp >= 2:
            e("v_writelane_b32 v252, s100, 12")
            e("s_mov_b64 exec, 0xffff")
            e(f"v_subrev_u32 v252, s{sTS}, v252")
            e(f"v_lshlrev_b32 v0, 2, v{vLane}")
            e(f"s_add_u32 s{sT0}, s{sT0}, 0x10000")
            e(f"buffer_store_dword v252, v0, {srd(sWS)}, s{sT0} offen")
    e("L_end:")
    e("s_endpgm")
    e('.section .rodata,"a"')
    e(".p2align 6")
    e(f".amdhsa_kernel {o.name}_kernel")
    e(f"  .amdhsa_next_free_vgpr {NV}")
    e("  .amdhsa_next_free_sgpr 102")
    e(f"  .amdhsa_accum_offset {NV}")
    e("  .amdhsa_group_segment_fixed_size 0")
    e("  .amdhsa_kernarg_size 64")
    e("  .amdhsa_user_sgpr_count 2")
    e("  .amdhsa_user_sgpr_kernarg_segment_ptr 1")
    e("  .amdhsa_system_sgpr_workgroup_id_x 1")
    e(".end_amdhsa_kernel")
    return "\n".join(x for x in out if x is not None) + "\n"

if __name__ == "__main__":
    o = Opt()
    path = sys.argv[1]
    for a in sys.argv[2:]:
        k, v = a.split("=")
        assert hasattr(o, k), k
        setattr(o, k, int(v))
    open(path, "w").write(gen(o))
```

```python
import sys, struct
def f2u(x): return struct.unpack('<I', struct.pack('<f', x))[0]

NAME = "standalone__self_sup_conv_stem_hubert__speech"
HDR = """; Kernarg layout for this problem (64 bytes, ptrs only, base s[0:1]):
"""

class Opt:
    stamp = 0
    xnt = 2
    tnt = 9
    wnt = 0
    hnt = 0
    lo = 0
    rt = 0
    pd = 1
    sx = 0
    tch = 0
    tn1 = 1
    tn2 = 0
    l1 = 0
    bnt = 0
    pt = -1
    tf = 1
    wf = 0
    eps = 1
    ep = 9
    rs = 128
    slp = 0
    b1 = 1
    w1 = 0
    l0 = 9
    lpi = 6
    ppi = 3
    p0 = 10
    dbg = 0
    inv = 0
    dsc1 = 1
    prio = 0
    osc1 = 0
    ont = 0
    warm = 0
    name = NAME

L = 7985
TS = 250
XBYTES = 2*16000*256*2
WBYTES = 31*256*256*2
OBYTES = 2*L*256*2
XBASE = 65536
XBUF = 34816
XCH = XBASE + 2*XBUF
LDS_BYTES = XCH + 16384
WS_HS = 0x100000
WS_S = 0x400000
SIMG = 34816
WS_BYTES = 0x1000000

S1 = 0
S2 = 64
FR = 128
WF = 220
WF2 = 248
vAlo, vAhi, vWrd = 228, 229, 230
PB, PG, PE = 232, 234, 236
vLane, vI, vG, vT0, vT1, vT2, vT3 = 238, 239, 240, 241, 242, 243, 244
vOut, vXw, vXr = 245, 246, 247
vEw, vEr = 253, 254
NV = 256
hX0, hX1, hW0, hW1, hLin, hA0, hA1, hB = 8, 9, 10, 11, 12, 13, 14, 15
hT = 16
hD = 32
sX, sW, sO, sWS, sDB, sB, sGA, sBE = 4, 8, 12, 16, 20, 24, 28, 32
sWave, sB_, sTile, sChg, sBt, sRho, sH, sIt, sHook = 36, 37, 38, 39, 40, 41, 42, 43, 44
sT0, sT1, sT2, sT3 = 45, 46, 47, 48
sRec = 49
sWm0, sXm0, sWoff, sWstr, sWb0, sWb1, sXb0, sXb1, sWinc, sXinc, sXoff, sXstr = range(50, 62)
sKc, sP, sSimg, sMsk, sHs0, sHs1 = 62, 63, 64, 65, 66, 67
sXs, sWsrc = 72, 76
sMask = 56
sSign, sO1, sO2, sO3, sRn = 84, 85, 86, 87, 54
sTS = 88

def F(u): return f"v[{FR+4*u}:{FR+4*u+3}]"
def A(s): return f"v[{S1+4*s}:{S1+4*s+3}]"
def Wr(k): return WF2 if k == 2 else WF+4*k
def Wf(k): return f"v[{Wr(k)}:{Wr(k)+3}]"
def srd(r): return f"s[{r}:{r+3}]"
def P(r): return f"v[{r}:{r+1}]"
def Q4(r): return f"v[{r}:{r+3}]"

def NT(x): return ' nt' if x else ''
def gen(o):
    out = []
    e = out.append
    e(HDR + f"; @launch grid=(256,1,1) block=(512,1,1) lds={LDS_BYTES}")
    e('.amdgcn_target "amdgcn-amd-amdhsa--gfx950"')
    e(".text")
    e(f".globl {o.name}_kernel")
    e(".p2align 8")
    e(f".type {o.name}_kernel,@function")
    e(f"{o.name}_kernel:")
    e("s_cmp_ge_u32 s2, 256")
    e("s_cbranch_scc1 L_end")
    def stamp(k):
        if o.stamp: e(f"{'s_memrealtime' if o.rt else 's_memtime'} s[{sTS+2*k}:{sTS+2*k+1}]")
    if o.stamp: e(f"s_memrealtime s[{sTS+10}:{sTS+11}]")
    stamp(0)
    e(f"s_load_dwordx4 s[{sXs}:{sXs+3}], s[0:1], 0")
    e(f"v_lshrrev_b32 v1, 6, v0")
    e(f"v_and_b32 v{vLane}, 63, v0")
    e(f"v_readfirstlane_b32 s{sWave}, v1")
    e(f"s_bfe_u32 s{sB_}, s2, 0x10002")
    e(f"s_and_b32 s{sTile}, s2, 3")
    e(f"s_lshl_b32 s{sTile}, s{sTile}, 2")
    e(f"s_bfe_u32 s{sT0}, s2, 0x20003")
    e(f"s_or_b32 s{sTile}, s{sTile}, s{sT0}")
    e(f"s_lshr_b32 s{sChg}, s2, 5")
    e(f"s_load_dwordx2 s[{sWS}:{sWS+1}], s[0:1], 56")
    e(f"s_load_dwordx2 s[{sDB}:{sDB+1}], s[0:1], 48")
    e(f"s_cmp_lt_u32 s{sWave}, 4")
    e("s_cbranch_scc1 L_compute")
    e(f"s_and_b32 s{sRho}, s{sWave}, 1")
    e(f"s_mul_i32 s{sT0}, s{sB_}, {16000*512}")
    e(f"s_mul_i32 s{sT1}, s{sTile}, {4*TS*512}")
    e(f"s_add_u32 s{sT0}, s{sT0}, s{sT1}")
    e(f"s_cmp_ge_u32 s{sWave}, 6")
    e("s_cbranch_scc1 L_trans")
    e(f"s_lshl_b32 s{sT1}, s{sRho}, 14")
    e(f"s_add_u32 s{sT0}, s{sT0}, s{sT1}")
    e(f"v_lshrrev_b32 v1, 3, v{vLane}")
    e(f"v_and_b32 v2, 7, v{vLane}")
    e(f"v_lshlrev_b32 v2, 4, v2")
    e(f"v_lshl_add_u32 v4, v1, 11, v2")
    e(f"v_add_u32 v{hX0}, s{sT0}, v4")
    e(f"v_xor_b32 v{hX1}, 32, v{hX0}")
    e(f"v_lshrrev_b32 v1, 2, v{vLane}")
    e(f"v_and_b32 v3, 48, v2")
    e(f"v_and_b32 v5, 32, v{vLane}")
    e(f"v_xor_b32 v5, v5, v3")
    e(f"v_lshl_add_u32 v5, v1, 9, v5")
    e(f"s_lshl_b32 s{sKc}, s{sChg}, 6")
    e(f"v_add_u32 v{hW0}, s{sKc}, v5")
    e(f"v_add_u32 v{hW1}, 8192, v{hW0}")
    e(f"s_lshl_b32 s{sWm0}, s{sRho}, 11")
    e(f"s_lshl_b32 s{sXm0}, s{sRho}, 10")
    e(f"s_add_u32 s{sXm0}, s{sXm0}, {XBASE}")
    e(f"s_mov_b32 s{sXb0}, 0")
    e(f"s_lshl_b32 s{sWb0}, s{sRho}, 14")
    e(f"s_mov_b32 s{sXstr}, 32768")
    e(f"s_mov_b32 s{sWstr}, 524288")
    def mk_srds():
        e("s_waitcnt lgkmcnt(0)")
        e(f"s_mov_b32 s{sWsrc}, s{sXs+2}")
        e(f"s_and_b32 s{sWsrc+1}, s{sXs+3}, 0xffff")
        e(f"s_mov_b32 s{sWsrc+2}, {WBYTES}")
        e(f"s_mov_b32 s{sWsrc+3}, 0x00020000")
        e(f"s_and_b32 s{sXs+1}, s{sXs+1}, 0xffff")
        e(f"s_mov_b32 s{sXs+2}, {XBYTES}")
        e(f"s_mov_b32 s{sXs+3}, 0x00020000")
    mk_srds()
    if o.stamp: e("s_memtime s[90:91]")
    log = []
    lab = [0]
    pro = [1]
    def xdma(par, tag, fl=""):
        for k in range(17):
            if k == 16:
                lab[0] += 1
                e(f"s_cmp_lg_u32 s{sRho}, 0")
                e(f"s_cbranch_scc1 L_sk{lab[0]}")
            e(f"s_add_u32 m0, s{sXm0}, {par*XBUF + k*2112}")
            if k == 0: e(f"s_mov_b32 s{sXoff}, s{sXb1 if par else sXb0}")
            else: e(f"s_add_u32 s{sXoff}, s{sXoff}, s{sXstr}")
            e(f"buffer_load_dwordx4 v{hX1 if (k >> 2) & 1 else hX0}, {srd(sXs)}, s{sXoff} offen{fl or NT(o.xnt == 1 or (o.xnt == 2 and pro[0]))} lds")
            log.append((tag, k < 16))
        e(f"L_sk{lab[0]}:")
    def wdma(par, i0, tag, fl=""):
        for i in range(i0, i0+4):
            e(f"s_add_u32 m0, s{sWm0}, {(par*8 + i)*4096}")
            if i == 0: e(f"s_mov_b32 s{sWoff}, s{sWb1 if par else sWb0}")
            else: e(f"s_add_u32 s{sWoff}, s{sWoff}, s{sWstr}")
            e(f"buffer_load_dwordx4 v{hW0}, {srd(sWsrc)}, s{sWoff} offen{fl or NT(o.wnt)} lds")
            e(f"s_add_u32 m0, m0, 1024")
            e("s_nop 0")
            e(f"buffer_load_dwordx4 v{hW1}, {srd(sWsrc)}, s{sWoff} offen{fl or NT(o.wnt)} lds")
            log.extend([(tag, True)]*2)
    def wait_for(tags):
        idx = [i for i, (t, c) in enumerate(log) if t in tags]
        for t in tags: assert any(t == x for x, _ in log), t
        n = sum(1 for t, c in log[max(idx)+1:] if c)
        assert n <= 63
        return n
    def adv():
        e(f"s_add_u32 s{sWb0}, s{sWb0}, s{sWinc}"); e(f"s_add_u32 s{sWb1}, s{sWb1}, s{sWinc}")
        e(f"s_add_u32 s{sXb0}, s{sXb0}, s{sXinc}"); e(f"s_add_u32 s{sXb1}, s{sXb1}, s{sXinc}")
    if o.wf: wdma(0, 0, ("w", 0, 0)); xdma(0, ("x", 0))
    else: xdma(0, ("x", 0)); wdma(0, 0, ("w", 0, 0))
    if o.stamp: e("s_memtime s[92:93]")
    if o.b1 == 0: e("s_barrier")
    e(f"s_add_u32 s{sXb1}, s{sXb0}, 512")
    e(f"s_add_u32 s{sWb1}, s{sWb0}, 131072")
    e(f"s_mov_b32 s{sWinc}, 32768")
    e(f"s_mov_b32 s{sXinc}, 128")
    xdma(1, ("x", 1)); wdma(0, 4, ("w", 0, 1))
    if o.b1 == 1: e("s_barrier")
    wdma(1, 0, ("w", 1, 0))
    if o.b1 == 2: e("s_barrier")
    if o.w1: wdma(1, 4, ("w", 1, 1))
    if o.b1 == 3: e("s_barrier")
    e(f"s_waitcnt vmcnt({wait_for([('x', 0), ('w', 0, 0)])})")
    if o.stamp: e("s_memtime s[94:95]")
    e("s_barrier")
    if not o.w1: wdma(1, 4, ("w", 1, 1))
    adv()
    pro[0] = 0
    def interval(c, j, fl):
        par = c & 1
        need = [("x", c+1), ("w", c, 1)] if j == 3 else [("w", c+1, 0)]
        n = wait_for(need)
        e(f"s_waitcnt vmcnt({n})")
        e("s_barrier")
        if j == 3:
            xdma(par, ("x", c+2), fl); wdma(par, 0, ("w", c+2, 0), fl)
        else:
            wdma(par, 4, ("w", c+2, 1), fl)
        return n
    e(f"s_mov_b32 s{sIt}, 0")
    e("L_dloop1:")
    e(f"s_cmp_lg_u32 s{sIt}, 3")
    e("s_cbranch_scc1 L_dl1")
    for r in (sWb0, sWb1): e(f"s_add_u32 s{r}, s{r}, 131072")
    for r in (sXb0, sXb1): e(f"s_add_u32 s{r}, s{r}, 512")
    e("L_dl1:")
    n1 = [interval(c, j, "") for c in (0, 1) for j in (3, 7)]
    assert n1 == [16, 32, 16, 32], n1
    adv()
    e(f"s_add_u32 s{sIt}, s{sIt}, 1")
    e(f"s_cmp_lt_u32 s{sIt}, 7")
    e("s_cbranch_scc1 L_dloop1")
    e(f"s_mov_b32 s{sXs}, s{sWS}")
    e(f"s_and_b32 s{sXs+1}, s{sWS+1}, 0xffff")
    e(f"s_mov_b32 s{sXs+2}, {WS_BYTES}")
    for q in range(3): e(f"s_mov_b32 s{sWsrc+q}, s{sXs+q}")
    e(f"v_lshlrev_b32 v{hW0}, 4, v{vLane}")
    e(f"s_lshl_b32 s{sT0}, s{sRho}, 10")
    e(f"v_add_u32 v{hX0}, s{sT0}, v{hW0}")
    e(f"v_add_u32 v{hX1}, s{sT0}, v{hW0}")
    e(f"v_add_u32 v{hW1}, 1024, v{hW0}")
    e(f"s_lshl_b32 s{sT1}, s{sB_}, 4")
    e(f"s_or_b32 s{sT1}, s{sT1}, s{sTile}")
    e(f"s_mul_i32 s{sXb0}, s{sT1}, {8*SIMG}")
    e(f"s_add_u32 s{sXb0}, s{sXb0}, {WS_S}")
    e(f"s_add_u32 s{sXb1}, s{sXb0}, {4*SIMG}")
    e(f"s_mov_b32 s{sXinc}, {SIMG}")
    e(f"s_mov_b32 s{sXstr}, 2048")
    e(f"s_lshl_b32 s{sWb0}, s{sChg}, 18")
    e(f"s_lshl_b32 s{sT0}, s{sRho}, 17")
    e(f"s_add_u32 s{sWb0}, s{sWb0}, s{sT0}")
    e(f"s_add_u32 s{sWb0}, s{sWb0}, {WS_HS}")
    e(f"s_add_u32 s{sWb1}, s{sWb0}, 16384")
    e(f"s_mov_b32 s{sWinc}, 32768")
    e(f"s_mov_b32 s{sWstr}, 2048")
    e("L_dloop2:")
    n2 = [interval(c, j, " sc1") for c in (2, 3) for j in (3, 7)]
    assert n2 == n1
    adv()
    e(f"s_add_u32 s{sIt}, s{sIt}, 1")
    e(f"s_cmp_lt_u32 s{sIt}, 11")
    e("s_cbranch_scc1 L_dloop2")
    for n in (16, 8, 0):
        e(f"s_waitcnt vmcnt({n})")
        e("s_barrier")
    if o.stamp:
        e(f"s_lshl_b32 s{sT0}, s2, 2")
        e(f"s_add_u32 s{sT0}, s{sT0}, s{sRho}")
        e(f"s_lshl_b32 s{sT0}, s{sT0}, 6")
        e(f"s_add_u32 s{sT0}, s{sT0}, 0x40020")
        e("s_mov_b64 exec, 1")
        e("v_mov_b32 v0, 0")
        for k in range(3):
            e(f"s_sub_u32 s{sT1}, s{90+2*k}, s{sTS}")
            e(f"v_mov_b32 v1, s{sT1}")
            e(f"buffer_store_dword v1, v0, {srd(sXs)}, s{sT0} offen offset:{4*k}")
    e("s_endpgm")
    e("L_trans:")
    log = []
    e(f"s_lshl_b32 s{sT1}, s{sRho}, 9")
    e(f"s_add_u32 s{sT0}, s{sT0}, s{sT1}")
    e(f"s_add_u32 s{sT0}, s{sT0}, 1024")
    e(f"v_lshrrev_b32 v1, 3, v{vLane}")
    e(f"v_and_b32 v2, 7, v{vLane}")
    e(f"v_lshlrev_b32 v2, 4, v2")
    e(f"v_lshl_add_u32 v2, v1, 11, v2")
    e(f"v_add_u32 v{hA0}, s{sT0}, v2")
    e(f"v_lshrrev_b32 v1, 5, v{vLane}")
    e(f"v_lshlrev_b32 v{hLin}, 4, v{vLane}")
    def urg(u):
        e(f"s_add_u32 s{sT1}, s{sChg}, {8*u}")
        e(f"s_mul_i32 s{sT2}, s{sT1}, 241")
        e(f"s_lshr_b32 s{sT2}, s{sT2}, 13")
        e(f"s_mul_i32 s{sT3}, s{sT2}, 34")
        e(f"s_sub_u32 s{sT1}, s{sT1}, s{sT3}")
    e(f"s_lshr_b32 s{sT2}, s2, 5")
    e(f"s_lshl_b32 s{sHs0}, s{sT2}, 19")
    e(f"s_lshl_b32 s{sHs1}, s{sT2}, 11")
    e(f"s_bfe_u32 s{sT2}, s2, 0x10004")
    e(f"s_lshl_b32 s{sT3}, s{sT2}, 17")
    e(f"s_add_u32 s{sHs0}, s{sHs0}, s{sT3}")
    e(f"s_lshl_b32 s{sT3}, s{sT2}, 14")
    e(f"s_add_u32 s{sHs1}, s{sHs1}, s{sT3}")
    e(f"s_and_b32 s{sT2}, s2, 15")
    e(f"s_lshl_b32 s{sT2}, s{sT2}, 11")
    e(f"s_add_u32 s{sHs0}, s{sHs0}, s{sT2}")
    e(f"s_lshl_b32 s{sT2}, s{sRho}, 10")
    e(f"s_add_u32 s{sHs0}, s{sHs0}, s{sT2}")
    mk_srds()
    units = [("s", u) for u in range(17)] + [("h", k) for k in range(4)]
    NU = len(units)
    hl = [(n, h) for n in range(17, 21) for h in (0, 1)]
    loads = [(n, 0) for n in range(4, 13)] + hl + [(n, 0) for n in range(13, 17)] + [(n, 1) for n in range(17)] + [(n, 0) for n in range(4)]
    if o.lo == 1: loads = [(n, 0) for n in range(4, 17)] + hl + [(n, 1) for n in range(17)] + [(n, 0) for n in range(4)]
    if o.lo == 2: loads = [(n, 0) for n in range(4, 9)] + hl + [(n, 0) for n in range(9, 17)] + [(n, 1) for n in range(17)] + [(n, 0) for n in range(4)]
    if o.lo == 3: loads = [(n, 0) for n in range(4, 9)] + [(18, 0)] + [(n, 0) for n in range(9, 13)] + [(19, 0), (20, 0)] + [(n, 0) for n in range(13, 17)] + [(n, 1) for n in range(17, 21)] + [(n, 1) for n in range(17)] + [(17, 0)] + [(n, 0) for n in range(4)]
    if o.lo == 4: loads = [(18, 0)] + [(n, 0) for n in range(4, 9)] + [(19, 0)] + [(n, 0) for n in range(9, 13)] + [(20, 0)] + [(n, 0) for n in range(13, 17)] + [(n, 1) for n in range(17)] + [(n, 1) for n in range(17, 21)] + [(17, 0)] + [(n, 0) for n in range(4)]
    if o.lo == 5: loads = [(n, 0) for n in range(4, 17)] + [(n, 1) for n in range(17)] + [(n, 0) for n in range(4)] + [(18, 0), (19, 0), (20, 0)] + [(n, 1) for n in range(17, 21)] + [(17, 0)]
    if o.lo == 6: loads = [(18, 0)] + [(n, 0) for n in range(4, 17)] + [(19, 0), (20, 0)] + [(n, 1) for n in range(17)] + [(n, 0) for n in range(4)] + [(n, 1) for n in range(17, 21)] + [(17, 0)]
    assert sorted(loads) == sorted((n, h) for n in range(21) for h in (0, 1))
    order = (list(range(17, 21)) + list(range(4, 17)) if o.lo < 3 else list(range(4, 17)) + [18, 19, 20, 17]) + list(range(4))
    def uload(n, h):
        kind, k = units[n]; d = hD + 8*n + 4*h
        if kind == "s":
            urg(k)
            e(f"s_lshl_b32 s{sT0}, s{sT1}, 14")
            e(f"s_lshl_b32 s{sT2}, s{sT2}, 7")
            e(f"s_add_u32 s{sT0}, s{sT0}, s{sT2}")
            if h == 0: e(f"s_add_u32 s{sT0}, s{sT0}, 1024")
            e(f"buffer_load_dwordx4 {Q4(d)}, v{hA0}, {srd(sXs)}, s{sT0} offen{NT(o.bnt or (h == 0 and 4 <= k < 4 + o.tnt))}")
        else:
            e(f"s_add_u32 s{sT0}, s{sHs0}, {k*32768 + h*262144}")
            e(f"buffer_load_dwordx4 {Q4(d)}, v{hLin}, {srd(sWsrc)}, s{sT0} offen{NT(o.hnt)}")
        log.append((("ul", n, h), True))
    def uproc(n):
        kind, k = units[n]; d = hD + 8*n; t = hT; ob = hT + 4 + 4*(n & 1)
        e(f"s_waitcnt vmcnt({wait_for([('ul', n, 0), ('ul', n, 1)])})")
        ng = "-" if kind == "h" else ""
        for q in range(4):
            a, b = d+q, d+4+q
            e(f"v_lshlrev_b32 v{t}, 16, v{a}")
            e(f"v_lshlrev_b32 v{t+1}, 16, v{b}")
            e(f"v_and_b32 v{t+2}, s{sMsk}, v{a}")
            e(f"v_and_b32 v{t+3}, s{sMsk}, v{b}")
            e(f"v_add_f32 v{t}, {ng}v{t}, {ng}v{t+1}")
            e(f"v_add_f32 v{t+2}, {ng}v{t+2}, {ng}v{t+3}")
            e(f"v_cvt_pk_bf16_f32 v{ob+q}, v{t}, v{t+2}")
        if kind == "s":
            urg(k)
            e(f"s_mul_i32 s{sT0}, s{sT2}, {SIMG}")
            e(f"s_add_u32 s{sT0}, s{sT0}, s{sSimg}")
            e(f"s_and_b32 s{sT2}, s{sT1}, 8")
            e(f"s_lshl_b32 s{sT2}, s{sT2}, 2")
            e(f"v_xor_b32 v{hB}, s{sT2}, v{hLin}")
            e(f"s_lshl_b32 s{sT1}, s{sT1}, 10")
            e(f"s_add_u32 s{sT0}, s{sT0}, s{sT1}")
            e(f"buffer_store_dwordx4 {Q4(ob)}, v{hB}, {srd(sWS)}, s{sT0} offen sc1")
        else:
            e(f"s_add_u32 s{sT0}, s{sHs1}, {k*32768}")
            e(f"buffer_store_dwordx4 {Q4(ob)}, v{hX1}, {srd(sWS)}, s{sT0} offen sc1")
        log.append((("us", n), True))
    e("s_barrier")
    li = 0
    def some_loads(cnt):
        nonlocal li
        for n, h in loads[li:li+cnt]: uload(n, h)
        li = min(len(loads), li+cnt)
    some_loads(o.l0)
    for r, n in ((sWS, WS_BYTES), (sDB, 256)):
        e(f"s_and_b32 s{r+1}, s{r+1}, 0xffff")
        e(f"s_mov_b32 s{r+2}, {n}")
        e(f"s_mov_b32 s{r+3}, 0x00020000")
    e(f"s_lshl_b32 s{sBt}, s{sB_}, 4")
    e(f"s_or_b32 s{sBt}, s{sBt}, s{sTile}")
    e(f"s_mov_b32 s{sMsk}, 0xffff0000")
    e(f"s_lshl_b32 s{sT1}, s{sBt}, 1")
    e(f"s_add_u32 s{sT1}, s{sT1}, s{sRho}")
    e(f"s_mul_i32 s{sSimg}, s{sT1}, {4*SIMG}")
    e(f"s_add_u32 s{sSimg}, s{sSimg}, {WS_S}")
    e(f"v_bfe_u32 v2, v{vLane}, 2, 3")
    e(f"v_lshlrev_b32 v2, 18, v2")
    e(f"v_lshl_add_u32 v2, v1, 6, v2")
    e(f"v_and_b32 v3, 3, v{vLane}")
    e(f"v_lshl_add_u32 v2, v3, 4, v2")
    e(f"s_bfe_u32 s{sT1}, s2, 0x10001")
    e(f"s_lshl_b32 s{sT1}, s{sT1}, 5")
    e(f"v_xor_b32 v{hX1}, s{sT1}, v2")
    e(f"s_bfe_u32 s{sT2}, s2, 0x10003")
    e(f"s_lshl_b32 s{sT2}, s{sT2}, 17")
    e(f"s_add_u32 s{sHs1}, s{sHs1}, s{sT2}")
    e(f"s_and_b32 s{sT2}, s2, 7")
    e(f"s_lshl_b32 s{sT2}, s{sT2}, 8")
    e(f"s_add_u32 s{sHs1}, s{sHs1}, s{sT2}")
    e(f"s_lshl_b32 s{sT2}, s{sRho}, 7")
    e(f"s_add_u32 s{sHs1}, s{sHs1}, s{sT2}")
    e(f"s_add_u32 s{sHs1}, s{sHs1}, {WS_HS}")
    e(f"s_lshl_b32 s{sRec}, s{sB_}, 3")
    e(f"s_or_b32 s{sRec}, s{sRec}, s{sChg}")
    e(f"s_lshl_b32 s{sRec}, s{sRec}, 13")
    e(f"s_lshl_b32 s{sT2}, s{sRho}, 4")
    e(f"s_add_u32 s{sT2}, s{sT2}, s{sTile}")
    e(f"s_lshl_b32 s{sT2}, s{sT2}, 7")
    e(f"s_add_u32 s{sT2}, s{sT2}, s{sRec}")
    e(f"v_and_b32 v6, 31, v{vLane}")
    e(f"v_lshlrev_b32 v6, 2, v6")
    e(f"v_lshl_add_u32 v6, v1, 12, v6")
    e(f"v_mov_b32 v7, -1")
    e("s_barrier")
    e(f"buffer_store_dword v7, v6, {srd(sWS)}, s{sT2} offen sc1")
    log.append(("rst", True))
    m = -1
    pi = 0
    while pi < NU:
        if m + 1 >= o.l1: some_loads(o.lpi)
        if m + 1 == o.pt:
            tl = [(n, 0) for n in range(9, 17)] + [(n, 1) for n in range(17)]
            e(f"s_waitcnt vmcnt({wait_for([('ul', n, h) for n, h in tl])})")
            for n, h in tl:
                urg(n)
                e(f"s_lshl_b32 s{sT0}, s{sT1}, 14")
                e(f"s_lshl_b32 s{sT2}, s{sT2}, 7")
                e(f"s_add_u32 s{sT0}, s{sT0}, s{sT2}")
                e(f"buffer_load_dword v{hA1}, v{hA0}, {srd(sXs)}, s{sT0} offen offset:{0 if h else 1024}{('', ' sc0', ' sc1')[o.tf]}")
                log.append((("touch", n, h), True))
        if m + 1 >= o.p0:
            assert li == len(loads)
            for n in order[pi:pi+o.ppi]: uproc(n)
            pi += o.ppi
        e("s_barrier"); m += 1
    for _ in range(2):
        e("s_barrier"); m += 1
    e("s_waitcnt vmcnt(0)")
    e("s_barrier"); m += 1
    e(f"s_cmp_lg_u32 s{sWave}, 6")
    e("s_cbranch_scc1 L_end2")
    e("s_mov_b64 exec, 1")
    e("v_mov_b32 v6, 0")
    e("v_mov_b32 v7, 1")
    e(f"buffer_atomic_add v7, v6, {srd(sDB)}, 0 offen sc1")
    lastm = 25
    assert m < lastm
    e(f"s_mov_b32 s{sIt}, {m}")
    e("L_tw:")
    e("s_barrier")
    e(f"s_add_u32 s{sIt}, s{sIt}, 1")
    e(f"s_cmp_lt_u32 s{sIt}, {lastm}")
    e("s_cbranch_scc1 L_tw")
    e(f"buffer_load_dword v7, v6, {srd(sDB)}, 0 offen sc1")
    e("s_barrier")
    e("s_barrier")
    e(f"s_mov_b32 s{sT3}, 0")
    e("L_tp:")
    e("s_waitcnt vmcnt(0)")
    e(f"v_readfirstlane_b32 s{sT2}, v7")
    e(f"s_add_u32 s{sT3}, s{sT3}, 1")
    e(f"s_cmp_ge_u32 s{sT2}, 256")
    e("s_cbranch_scc1 L_tq")
    e(f"s_cmp_ge_u32 s{sT3}, 0x20000")
    e("s_cbranch_scc1 L_tq")
    e(f"buffer_load_dword v7, v6, {srd(sDB)}, 0 offen sc1")
    e("s_branch L_tp")
    e("L_tq:")
    e("s_barrier")
    e("L_end2:")
    e("s_endpgm")
    e(".p2align 6")
    e("L_compute:")
    if o.tch:
        e(f"s_mul_i32 s{sT0}, s{sB_}, {16000*512}")
        e(f"s_mul_i32 s{sT1}, s{sTile}, {4*TS*512}")
        e(f"s_add_u32 s{sT0}, s{sT0}, s{sT1}")
        e(f"s_lshl_b32 s{sT1}, s{sChg}, 16")
        e(f"s_add_u32 s{sT0}, s{sT0}, s{sT1}")
        e(f"s_and_b32 s{sT1}, s{sWave}, 1")
        e(f"s_lshl_b32 s{sT2}, s{sT1}, 7")
        e(f"s_add_u32 s{sT0}, s{sT0}, s{sT2}")
        e(f"v_and_b32 v2, 31, v{vLane}")
        e(f"v_lshrrev_b32 v3, 5, v{vLane}")
        e(f"v_lshlrev_b32 v3, 9, v3")
        e(f"v_lshl_add_u32 v2, v2, 11, v3")
        e(f"v_add_u32 v{FR}, s{sT0}, v2")
        e(f"s_lshr_b32 s{sT0}, s2, 5")
        e(f"s_lshl_b32 s{sT0}, s{sT0}, 19")
        e(f"s_bfe_u32 s{sT2}, s2, 0x20003")
        e(f"s_lshl_b32 s{sT2}, s{sT2}, 13")
        e(f"s_add_u32 s{sT0}, s{sT0}, s{sT2}")
        e(f"s_lshl_b32 s{sT1}, s{sT1}, 17")
        e(f"s_add_u32 s{sT0}, s{sT0}, s{sT1}")
        e(f"v_lshlrev_b32 v2, 7, v{vLane}")
        e(f"v_add_u32 v{FR+1}, s{sT0}, v2")
        e(f"s_bfe_u32 s{sT3}, s{sWave}, 0x10001")
        e(f"s_lshl_b32 s{sT3}, s{sT3}, 8")
        mk_srds()
        for q in range(4):
            e(f"s_mov_b32 s{sX+q}, s{sXs+q}")
            e(f"s_mov_b32 s{sW+q}, s{sWsrc+q}")
        e(f"s_cmp_ge_u32 s{sWave}, 2")
        e("s_cbranch_scc1 L_tc1")
        e(f"buffer_load_dword v231, v{FR+1}, {srd(sW)}, 0 offen")
        e("s_branch L_tc2")
        e("L_tc1:")
        e(f"buffer_load_dword v231, v{FR}, {srd(sX)}, 0 offen{NT(o.tn1)}")
        e("L_tc2:")
        e(f"s_mov_b32 s{sSign}, s{sT3}")
    e(f"s_bfe_u32 s{sRho}, s{sWave}, 0x10001")
    e(f"s_and_b32 s{sH}, s{sWave}, 1")
    e(f"s_lshl_b32 s{sRec}, s{sB_}, 3")
    e(f"s_or_b32 s{sRec}, s{sRec}, s{sChg}")
    e(f"s_lshl_b32 s{sRec}, s{sRec}, 1")
    e(f"s_or_b32 s{sRec}, s{sRec}, s{sH}")
    e(f"s_lshl_b32 s{sRec}, s{sRec}, 12")
    if o.prio: e(f"s_setprio {o.prio}")
    e(f"s_load_dwordx2 s[{sB}:{sB+1}], s[0:1], 16")
    e(f"s_load_dwordx2 s[{sGA}:{sGA+1}], s[0:1], 24")
    e(f"s_load_dwordx2 s[{sBE}:{sBE+1}], s[0:1], 32")
    e(f"s_load_dwordx2 s[{sO}:{sO+1}], s[0:1], 40")
    for r, n in ((sO, OBYTES), (sWS, WS_BYTES), (sDB, 256), (sB, 512), (sGA, 512), (sBE, 512)):
        e(f"s_mov_b32 s{r+2}, {n}")
        e(f"s_mov_b32 s{r+3}, 0x00020000")
    e(f"v_and_b32 v{vI}, 15, v{vLane}")
    e(f"v_lshrrev_b32 v{vG}, 4, v{vLane}")
    e(f"s_lshl_b32 s{sT0}, s{sRho}, 6")
    e(f"s_add_u32 s{sT0}, s{sT0}, {XBASE}")
    e(f"s_movk_i32 s{sT1}, 2112")
    for dst, add in ((vAlo, 0), (vAhi, 1)):
        e(f"v_add_u32 v{vT1}, {add}, v{vI}")
        e(f"v_bfe_u32 v{vT0}, v{vT1}, 2, 1")
        e(f"v_lshlrev_b32 v{vT0}, 1, v{vT0}")
        e(f"v_xor_b32 v{vT0}, v{vT0}, v{vG}")
        e(f"v_lshlrev_b32 v{vT0}, 4, v{vT0}")
        e(f"v_mad_u32_u24 v{dst}, v{vT1}, s{sT1}, v{vT0}")
        e(f"v_add_u32 v{dst}, s{sT0}, v{dst}")
    e(f"v_lshrrev_b32 v{vT0}, 2, v{vI}")
    e(f"v_lshl_add_u32 v{vT1}, v{vG}, 3, v{vT0}")
    e(f"v_and_b32 v{vT2}, 1, v{vG}")
    e(f"v_xor_b32 v{vT2}, s{sH}, v{vT2}")
    e(f"v_lshlrev_b32 v{vT2}, 5, v{vT2}")
    e(f"v_lshl_add_u32 v{vT1}, v{vT1}, 6, v{vT2}")
    e(f"v_and_b32 v{vT2}, 3, v{vLane}")
    e(f"v_lshl_add_u32 v{vWrd}, v{vT2}, 3, v{vT1}")
    e(f"s_lshl_b32 s{sT0}, s{sRho}, 11")
    e(f"v_add_u32 v{vWrd}, s{sT0}, v{vWrd}")
    e(f"s_lshl_b32 s{sT0}, s{sChg}, 6")
    e(f"s_lshl_b32 s{sT1}, s{sH}, 5")
    e(f"s_add_u32 s{sT0}, s{sT0}, s{sT1}")
    e(f"v_lshlrev_b32 v{vT0}, 3, v{vG}")
    e(f"v_add_u32 v{vT0}, s{sT0}, v{vT0}")
    e(f"s_mul_i32 s{sT1}, s{sB_}, {L}")
    e(f"s_mul_i32 s{sT2}, s{sTile}, {2*TS}")
    e(f"s_add_u32 s{sT1}, s{sT1}, s{sT2}")
    e(f"s_lshl_b32 s{sT2}, s{sRho}, 4")
    e(f"s_add_u32 s{sT1}, s{sT1}, s{sT2}")
    e(f"s_lshl_b32 s{sT1}, s{sT1}, 9")
    e(f"s_add_u32 s{sT1}, s{sT1}, s{sT0}")
    e(f"v_and_b32 v{vT1}, 1, v{vG}")
    e(f"v_lshlrev_b32 v{vT1}, 9, v{vT1}")
    e(f"v_lshrrev_b32 v{vT2}, 1, v{vG}")
    e(f"v_lshl_add_u32 v{vT1}, v{vT2}, 4, v{vT1}")
    e(f"v_lshl_add_u32 v{vOut}, v{vI}, 14, v{vT1}")
    e(f"v_add_u32 v{vOut}, s{sT1}, v{vOut}")
    e(f"v_lshlrev_b32 v{vT1}, 4, v{vLane}")
    e(f"s_lshl_b32 s{sT1}, s{sWave}, 12")
    e(f"s_add_u32 s{sT2}, s{sT1}, {XCH}")
    e(f"v_add_u32 v{vXw}, s{sT2}, v{vT1}")
    e(f"s_xor_b32 s{sT2}, s{sT1}, 0x2000")
    e(f"s_add_u32 s{sT2}, s{sT2}, {XCH}")
    e(f"v_add_u32 v{vXr}, s{sT2}, v{vT1}")
    e(f"s_lshl_b32 s{sT1}, s{sWave}, 13")
    e(f"v_add_u32 v{vEw}, s{sT1}, v{vT1}")
    e(f"v_xor_b32 v{vEr}, 0x4000, v{vEw}")
    e(f"s_mov_b32 s{sIt}, 0")
    e("s_waitcnt lgkmcnt(0)")
    for r in (sO, sWS, sDB, sB, sGA, sBE): e(f"s_and_b32 s{r+1}, s{r+1}, 0xffff")
    e(f"buffer_load_dwordx2 {P(PB)}, v{vT0}, {srd(sB)}, 0 offen")
    e(f"buffer_load_dwordx2 {P(PG)}, v{vT0}, {srd(sGA)}, 0 offen")
    e(f"buffer_load_dwordx2 {P(PE)}, v{vT0}, {srd(sBE)}, 0 offen")
    e(f"s_cmp_eq_u32 s{sTile}, 15")
    e(f"s_mov_b32 s{sRn}, 0")
    e(f"s_cselect_b32 s{sT1}, 3, 8")
    e(f"s_cselect_b32 s{sT2}, 0, 2")
    e(f"s_cselect_b32 s{sT3}, {f2u(1.0/245)}, s{sRn}")
    e(f"s_cselect_b32 s{sO2}, {f2u(1.0/240)}, s{sRn}")
    e(f"s_cmp_lg_u32 s{sTile}, 15")
    e(f"s_cselect_b32 s{sT3}, {f2u(1.0/256)}, s{sT3}")
    e(f"s_cselect_b32 s{sO2}, {f2u(1.0/244)}, s{sO2}")
    e(f"s_cmp_eq_u32 s{sRho}, 0")
    e(f"s_cselect_b32 s{sT1}, s{sT1}, s{sT2}")
    e(f"s_cselect_b32 s{sRn}, s{sT3}, s{sO2}")
    for q in range(8):
        m = sMask + 2*q
        e(f"s_cmp_gt_u32 s{sT1}, {q}")
        e(f"s_cselect_b32 s{m}, -1, 0x7fff7fff")
        e(f"s_mov_b32 s{m+1}, s{m}")
    e(f"s_cmp_gt_u32 s{sT1}, 3")
    e(f"s_cselect_b32 s{sMask+16}, -1, 0x7fff7fff")
    e(f"s_mov_b32 s{sMask+17}, s{sMask+16}")
    e(f"s_and_b32 s{sT2}, s{sMask+4}, 0xffff")
    e(f"s_and_b32 s{sT3}, s{sMask+16}, 0xffff0000")
    e(f"s_or_b32 s{sMask+18}, s{sT2}, s{sT3}")
    e(f"s_mov_b32 s{sMask+19}, s{sMask+18}")
    e(f"s_movk_i32 s{sO1}, 4096")
    def mE(q): return f"s[{sMask+2*q}:{sMask+2*q+1}]"
    def mO(q): return mE(8 if q == 2 else q)
    def mS(q): return mE(9 if q == 2 else q)
    if o.tch != 2: e("s_barrier")
    if o.tch:
        e(f"s_cmp_ge_u32 s{sWave}, 2")
        e("s_cbranch_scc1 L_tc3")
        e(f"s_mov_b32 s{sT0}, 32768")
        e(f"buffer_load_dword v255, v{FR+1}, {srd(sW)}, s{sT0} offen")
        e("s_branch L_tc4")
        e("L_tc3:")
        e(f"buffer_load_dword v255, v{FR}, {srd(sX)}, 0 offen offset:256{NT(o.tn2)}")
        e("L_tc4:")
        e(f"buffer_load_dword v255, v{FR}, {srd(sX)}, s{sSign} offen offset:1024{NT(o.tn2)}")
    if o.tch == 2: e("s_barrier")
    for r in range(0, 128, 2): e(f"v_mov_b64 {P(r)}, 0")
    def xread(u, par):
        return f"ds_read_b128 {F(u)}, v{vAhi if u >= 16 else vAlo} offset:{par*XBUF + (u & 15)*128}"
    def wb(t): return 2 if t == 14 else (t & 1)
    def wread(slot):
        r = Wr(wb(slot))
        return [f"ds_read_b64_tr_b16 v[{r}:{r+1}], v{vWrd} offset:{slot*4096}",
                f"ds_read_b64_tr_b16 v[{r+2}:{r+3}], v{vWrd} offset:{slot*4096+256}"]
    e("s_barrier")
    stamp(1)
    if o.stamp == 3: e("s_memtime s[100:101]")
    for x in wread(0): e(x)
    for u in range(16): e(xread(u, 0))
    def body(name, acc, short, lim, xch=None, valu=None, early=None):
        e(".p2align 4")
        e(f"L_loop{name}:")
        if o.stamp == 2:
            e(f"s_mov_b32 m0, s{sIt}")
            e("s_nop 0")
            e(f"v_writelane_b32 v252, s100, m0")
            e("s_memtime s[100:101]")
        for par in (0, 1):
            nt = 7 if (short and par == 1) else 8
            for j in range(nt):
                t = par*8 + j
                last = j == nt-1
                e(f"s_waitcnt lgkmcnt({9 if j == 0 else 0})")
                if j == 3 or last:
                    e("s_barrier")
                    if o.stamp == 3 and name == "A":
                        e(f"s_lshl_b32 m0, s{sIt}, 2")
                        e(f"s_add_u32 m0, m0, {par*2 + (1 if last else 0)}")
                        e("s_nop 0")
                        e(f"v_writelane_b32 v252, s100, m0")
                        e("s_memtime s[100:101]")
                fill = [[] for _ in range(16)]
                fill[0] += wread(((par+1)*8) & 15 if last else t+1)
                np_ = par ^ 1
                if j == 0:
                    fill[1] += [xread(16, par), xread(17, par)]; fill[2] += [xread(18, par)]
                    fill[6] += ["s_waitcnt lgkmcnt(5)"]
                elif j == 1: fill[1] += [xread(19, par), xread(20, par)]
                elif j == 2: fill[1] += [xread(21, par)] + ([xread(22, par)] if nt == 8 else [])
                elif j == 3: fill[1] += [xread(0, np_), xread(1, np_)]; fill[2] += [xread(2, np_)]
                elif not last: fill[1] += [xread(j-1, np_)]
                elif j == 7:
                    fill[1] += [xread(6, np_), xread(7, np_)]
                    fill[2] += [xread(8, np_), xread(9, np_)]
                    for u in range(10, 16): fill[u-7] += [xread(u, np_)]
                else:
                    fill[1] += [xread(5, np_), xread(6, np_)]
                    fill[2] += [xread(7, np_), xread(8, np_)]
                    for u in range(9, 16): fill[u-6] += [xread(u, np_)]
                if xch is not None and j in (1, 2, 4, 5):
                    for z in (0, 1):
                        q = 4*par + 2*((j-1) % 3) + z
                        fill[4+6*z] += [f"ds_write_b128 v{vXw}, {Q4(S2+32*xch+4*q)} offset:{(q & 3)*1024}" if j < 3 else
                                        f"ds_read_b128 {Q4(S2+32*xch+4*q)}, v{vXr} offset:{(q & 3)*1024}"]
                if early and not o.eps and t == o.ep:
                    for z, x in enumerate(early): fill[3+2*z] += [x]
                if early and o.eps and 0 <= t - o.ep < 4:
                    if t == o.ep: fill[3] += early[:2]
                    fill[8] += [early[2+t-o.ep]]
                if valu:
                    for s_ in range(1, 16):
                        if valu and not fill[s_]: fill[s_] += [valu.pop(0)]
                if last and par == 1:
                    fill[13] += [f"s_add_u32 s{sIt}, s{sIt}, 1"]
                    if lim: fill[14] += [f"s_cmp_lt_u32 s{sIt}, {lim}"]
                for s in range(16):
                    e(f"v_mfma_f32_16x16x32_bf16 {Q4(acc+4*s)}, {Wf(wb(t))}, {F(j+s)}, {Q4(acc+4*s)}")
                    for x in fill[s]: e(x)
        if lim: e(f"s_cbranch_scc1 L_loop{name}")
    body("A", S2, False, 4)
    body("B", S1, True, 8)
    for r in range(4): e(f"v_mov_b32_dpp v{vT0+r}, v{S2+r} row_shl:1 row_mask:0xf bank_mask:0xf")
    e("s_waitcnt vmcnt(0)")
    for s in range(16):
        if s == 14: e("s_nop 3")
        for h in (0, 2): e(f"v_pk_add_f32 {P(S2+4*s+h)}, {P(S2+4*s+h)}, {P(S1+4*s+h)}")
        if s < 15:
            for h in (0, 2): e(f"v_pk_add_f32 {P(S1+4*s+h)}, {P(S1+4*s+h)}, {P(S2+4*s+4+h)}")
        else:
            for r in range(4): e(f"v_add_f32 v{S1+60+r}, v{S1+60+r}, v{vT0+r}")
    e("s_nop 1")
    e(f"s_cmp_lg_u32 s{sRho}, 0")
    e("s_cbranch_scc1 L_loopQ0b")
    body("Q0a", S1, False, 0, xch=1)
    e("s_branch L_loopQ1")
    body("Q0b", S1, False, 0, xch=0)
    PV, A1, A2 = S2+32, S2+36, S2+40
    va = [f"v_add_f32 v{S2+k}, v{S2+k}, v{S2+32+k}" for k in range(32)]
    va += [f"v_mov_b32_dpp v{PV+r}, v{S2+r} row_newbcast:0 row_mask:0xf bank_mask:0xf" for r in range(4)]
    for q in range(8):
        K = S2 + 4*q
        va += [f"v_sub_f32 v{K+r}, v{K+r}, v{PV+r}" for r in range(4)]
        va += [f"v_cndmask_b32 v{K+r}, 0, v{K+r}, {mE(q)}" for r in range(4)]
        if q == 0: va += [f"v_mul_f32 v{A2+r}, v{K+r}, v{K+r}" for r in range(4)]
        else:
            va += [f"v_add_f32 v{A1+r}, v{K+r}, v{(S2 if q == 1 else A1)+r}" for r in range(4)]
            va += [f"v_fmac_f32 v{A2+r}, v{K+r}, v{K+r}" for r in range(4)]
    vNA, vNB = S2+60, S2+61
    RA = S2+44
    def recl(so):
        return [f"buffer_load_dwordx4 {Q4(RA+r)}, v{vT2}, {srd(sWS)}, s{so} offen offset:{off} sc1" for r, off in ((0, 0), (8, 2048), (4, 16), (12, 2064))]
    va += [f"v_cmp_eq_u32 vcc, 15, v{vI}", f"v_mov_b32 v{vNA}, {f2u(256.0)}", f"v_mov_b32 v{vNB}, {f2u(244.0)}",
           f"v_mov_b32 v{vT0}, {f2u(245.0)}", f"v_mov_b32 v{vT3}, {f2u(240.0)}",
           f"v_cndmask_b32 v{vNA}, v{vNA}, v{vT0}, vcc", f"v_cndmask_b32 v{vNB}, v{vNB}, v{vT3}, vcc",
           f"v_lshlrev_b32 v{vT0}, 5, v{vG}",
           f"v_lshl_add_u32 v{vT1}, v{vI}, 4, v{vT0}",
           f"v_lshl_add_u32 v{vT2}, v{vI}, 7, v{vT0}",
           f"v_cmp_eq_u32 vcc, 0, v{vI}",
           f"s_lshl_b32 s{sT1}, s{sRho}, 4", f"s_add_u32 s{sT1}, s{sT1}, s{sTile}",
           f"s_lshl_b32 s{sT1}, s{sT1}, 7", f"s_add_u32 s{sT1}, s{sT1}, s{sRec}",
           f"s_mov_b32 s{sO2}, {f2u(1.0/L)}", f"v_mov_b32 v{vT3}, {f2u(1e-5)}", f"s_mov_b32 s{sT3}, 0"]
    body("Q1", S1, False, 0, valu=va)
    assert not va
    body("Q", S1, False, 12, early=[f"s_cmp_eq_u32 s{sIt}, 11", f"s_cselect_b32 s{sO3}, s{sRec}, 0x7f000000"] + recl(sO3))
    stamp(2)
    T = FR
    e(f"s_cmp_lg_u32 s{sRho}, 0")
    e("s_cbranch_scc1 L_x1")
    def xodd(snd, own):
        for q in range(8): e(f"ds_write_b128 v{vEw}, {Q4(snd+4*q)} offset:{q*1024}")
        for q in range(8):
            for h in (0, 2): e(f"v_pk_add_f32 {P(own+4*q+h)}, {P(own+4*q+h)}, {P(PV+h)}")
        e("s_waitcnt lgkmcnt(0)")
        e("s_barrier")
        for q in range(8): e(f"ds_read_b128 {Q4(T+4*q)}, v{vEr} offset:{q*1024}")
        for q in range(8):
            e(f"s_mov_b64 exec, {mO(q)}")
            e(f"s_waitcnt lgkmcnt({7-q})")
            for h in (0, 2): e(f"v_pk_add_f32 {P(S1+4*q+h)}, {P(own+4*q+h)}, {P(T+4*q+h)}")
            for h in (0, 2): e(f"v_pk_add_f32 {P(A1+h)}, {P(A1+h)}, {P(S1+4*q+h)} neg_lo:[0,1] neg_hi:[0,1]")
            for h in (0, 2): e(f"v_pk_fma_f32 {P(A2+h)}, {P(S1+4*q+h)}, {P(S1+4*q+h)}, {P(A2+h)}")
        e("s_mov_b64 exec, -1")
    xodd(S1+32, S1)
    e("s_branch L_x2")
    e("L_x1:")
    xodd(S1, S1+32)
    e("L_x2:")
    def dppred(base, n=4, nop=1):
        if nop: e("s_nop 1")
        for sh in (8, 4, 2, 1):
            for r in range(n):
                e(f"v_add_f32_dpp v{base+r}, v{base+r}, v{base+r} row_ror:{sh} row_mask:0xf bank_mask:0xf")
    dppred(A1, 8)
    ML, PUB = T, T+4
    for r in range(4): e(f"v_mul_f32 v{ML+r}, s{sRn}, v{A1+r}")
    for r in range(4): e(f"v_fma_f32 v{A2+r}, -v{A1+r}, v{ML+r}, v{A2+r}")
    for r in range(4): e(f"v_add_f32 v{ML+r}, v{ML+r}, v{PV+r}")
    for r in range(4): e(f"v_cndmask_b32 v{PUB+r}, v{A2+r}, v{ML+r}, vcc")
    e("s_mov_b32 exec_lo, 0x00030003")
    e("s_mov_b32 exec_hi, 0x00030003")
    e(f"buffer_store_dwordx4 {Q4(PUB)}, v{vT1}, {srd(sWS)}, s{sT1} offen sc1")
    e("s_mov_b64 exec, -1")
    stamp(3)
    def recloads():
        for x in recl(sRec): e(x)
    MX = T+8
    def setup():
        for src, dst in ((PB, UB), (PG, UG), (PE, UE)):
            for h in range(2):
                e(f"v_lshlrev_b32 v{dst+2*h}, 16, v{src+h}")
                e(f"v_and_b32 v{dst+2*h+1}, 0xffff0000, v{src+h}")
        for h in range(2):
            e(f"v_mov_b32 v{C1+h}, {f2u(c1)}")
            e(f"v_mov_b32 v{C2+h}, {f2u(c2)}")
        for r in range(4): e(f"v_add_f32 v{PV+r}, v{PV+r}, v{UB+r}")
    UB, UG, UE, C1, C2 = T+32, T+36, T+40, T+44, T+46
    c1 = -2.0*1.4426950408889634*0.7978845608028654
    c2 = c1*0.044715
    mA, mB = sMask+20, sMask+22
    def check(lab):
        for z, m_ in ((0, mA), (8, mB)):
            e(f"v_max3_u32 v{MX+z//4}, v{RA+z}, v{RA+z+1}, v{RA+z+2}")
            e(f"v_max3_u32 v{MX+z//4+1}, v{RA+z+3}, v{RA+z+4}, v{RA+z+5}")
        for z, m_ in ((0, mA), (8, mB)): e(f"v_max3_u32 v{MX+z//4}, v{MX+z//4}, v{RA+z+6}, v{RA+z+7}")
        for z, m_ in ((0, mA), (8, mB)): e(f"v_max_u32 v{MX+z//4}, v{MX+z//4}, v{MX+z//4+1}")
        for z, m_ in ((0, mA), (8, mB)): e(f"v_cmp_eq_u32 s[{m_}:{m_+1}], -1, v{MX+z//4}")
        e(f"s_add_u32 s{sT3}, s{sT3}, 1")
        e(f"s_or_b64 vcc, s[{mA}:{mA+1}], s[{mB}:{mB+1}]")
        e(f"s_cbranch_scc0 {lab}")
    def reload(tag):
        rl = recl(sRec)
        for z, m_ in ((0, mA), (1, mB)):
            e(f"s_mov_b64 exec, s[{m_}:{m_+1}]")
            e(f"s_cbranch_execz L_pr{tag}{z}")
            e(rl[z]); e(rl[z+2])
            e(f"L_pr{tag}{z}:")
        e("s_mov_b64 exec, -1")
    e("s_waitcnt vmcnt(1)")
    check("L_poll0")
    reload(0)
    e("L_poll0:")
    setup()
    e("s_cbranch_vccz L_pollx")
    e("L_poll:")
    e("s_waitcnt vmcnt(0)")
    check("L_pollx")
    if o.slp: e(f"s_sleep {o.slp}")
    reload(1)
    e(f"s_cmp_lt_u32 s{sT3}, 0x20000")
    e("s_cbranch_scc1 L_poll")
    e("s_waitcnt vmcnt(0)")
    e("L_pollx:")
    MU, VAR, DA, DB, CC = T+8, T+12, T+16, T+20, T+24
    for r in range(4): e(f"v_mov_b32_dpp v{CC+r}, v{RA+r} row_newbcast:0 row_mask:0xf bank_mask:0xf")
    for r in range(4): e(f"v_sub_f32 v{DA+r}, v{RA+r}, v{CC+r}")
    for r in range(4): e(f"v_sub_f32 v{DB+r}, v{RA+8+r}, v{CC+r}")
    for r in range(4): e(f"v_mul_f32 v{RA+r}, v{DA+r}, v{vNA}")
    for r in range(4): e(f"v_mul_f32 v{RA+8+r}, v{DB+r}, v{vNB}")
    for r in range(4): e(f"v_add_f32 v{VAR+r}, v{RA+4+r}, v{RA+12+r}")
    for r in range(4): e(f"v_add_f32 v{MU+r}, v{RA+r}, v{RA+8+r}")
    for r in range(4): e(f"v_fmac_f32 v{VAR+r}, v{DA+r}, v{RA+r}")
    for r in range(4): e(f"v_fmac_f32 v{VAR+r}, v{DB+r}, v{RA+8+r}")
    for r in range(4): e(f"v_add_f32 v{CC+r}, v{CC+r}, v{UB+r}")
    dppred(MU, 8, 0)
    for r in range(4): e(f"v_mul_f32 v{MU+r}, s{sO2}, v{MU+r}")
    for r in range(4): e(f"v_fma_f32 v{VAR+r}, v{VAR+r}, s{sO2}, v{vT3}")
    for r in range(4): e(f"v_fma_f32 v{VAR+r}, -v{MU+r}, v{MU+r}, v{VAR+r}")
    for r in range(4): e(f"v_add_f32 v{MU+r}, v{MU+r}, v{CC+r}")
    for r in range(4): e(f"v_rsq_f32 v{VAR+r}, v{VAR+r}")
    SC, SH = T+24, T+28
    for r in range(4): e(f"v_sub_f32 v{MU+r}, v{PV+r}, v{MU+r}")
    for r in range(4): e(f"v_mul_f32 v{SC+r}, v{VAR+r}, v{UG+r}")
    for r in range(4): e(f"v_fma_f32 v{SH+r}, v{MU+r}, v{SC+r}, v{UE+r}")
    stamp(4)
    oflags = (" sc1" if o.osc1 else "") + (" nt" if o.ont else "")
    pend = None
    for q in range(8):
        zb = T + 48 + 8*(q & 1)
        ob = T + 64 + 4*(q & 3)
        U = ((S2+4*q, zb, ""), (S1+4*q, zb+4, " neg_lo:[1,0,0] neg_hi:[1,0,0]"))
        for y, z, ng in U:
            for h in (0, 2): e(f"v_pk_fma_f32 {P(y+h)}, {P(y+h)}, {P(SC+h)}, {P(SH+h)}{ng}")
        if pend:
            for x in pend: e(x)
        for y, z, ng in U:
            for h in (0, 2): e(f"v_pk_mul_f32 {P(z+h)}, {P(y+h)}, {P(y+h)}")
        for y, z, ng in U:
            for h in (0, 2): e(f"v_pk_fma_f32 {P(z+h)}, {P(z+h)}, {P(C2)}, {P(C1)}")
        for y, z, ng in U:
            for h in (0, 2): e(f"v_pk_mul_f32 {P(z+h)}, {P(z+h)}, {P(y+h)}")
        for r in range(8): e(f"v_exp_f32 v{zb+r}, v{zb+r}")
        for r in range(0, 8, 2): e(f"v_pk_add_f32 {P(zb+r)}, {P(zb+r)}, 1.0 op_sel_hi:[1,0]")
        for r in range(8): e(f"v_rcp_f32 v{zb+r}, v{zb+r}")
        for y, z, ng in U:
            for h in (0, 2): e(f"v_pk_mul_f32 {P(z+h)}, {P(z+h)}, {P(y+h)}")
        for r in range(4): e(f"v_cvt_pk_bf16_f32 v{ob+r}, v{zb+2*r}, v{zb+2*r+1}")
        so = "0" if q < 4 else f"s{sO1}"
        pend = [f"v_permlane16_swap_b32 v{ob}, v{ob+2}", f"v_permlane16_swap_b32 v{ob+1}, v{ob+3}",
                f"s_mov_b64 exec, {mS(q)}",
                f"buffer_store_dwordx4 {Q4(ob)}, v{vOut}, {srd(sO)}, {so} offen offset:{(q & 3)*1024}{oflags}",
                "s_mov_b64 exec, -1"]
    e("s_nop 1")
    for x in pend: e(x)
    if o.stamp:
        e("s_waitcnt vmcnt(0)")
        e(f"{'s_memrealtime' if o.rt else 's_memtime'} s[{sT1}:{sT1+1}]")
        e(f"s_memrealtime s[{sMask}:{sMask+1}]")
        e("s_mov_b64 exec, 1")
        e(f"s_lshl_b32 s{sT0}, s2, 2")
        e(f"s_add_u32 s{sT0}, s{sT0}, s{sWave}")
        e(f"s_lshl_b32 s{sT0}, s{sT0}, 6")
        e(f"s_add_u32 s{sT0}, s{sT0}, 0x40000")
        e("s_waitcnt lgkmcnt(0)")
        e("v_mov_b32 v0, 0")
        lst = [sTS+2, sTS+4, sTS+6, sTS+8, sT1]
        for k, r in enumerate(lst):
            e(f"s_sub_u32 s{sRn}, s{r}, s{sTS}")
            e(f"v_mov_b32 v1, s{sRn}")
            e(f"buffer_store_dword v1, v0, {srd(sWS)}, s{sT0} offen offset:{4*k}")
        e(f"s_sub_u32 s{sRn}, s{sMask}, s{sTS+10}")
        e(f"v_mov_b32 v1, s{sRn}")
        e(f"buffer_store_dword v1, v0, {srd(sWS)}, s{sT0} offen offset:20")
        e(f"v_mov_b32 v1, s{sTS+10}")
        e(f"buffer_store_dword v1, v0, {srd(sWS)}, s{sT0} offen offset:24")
        e(f"v_mov_b32 v1, s{sT3}")
        e(f"buffer_store_dword v1, v0, {srd(sWS)}, s{sT0} offen offset:28")
        if o.stamp >= 2:
            if o.stamp == 2: e("v_writelane_b32 v252, s100, 12")
            e("s_mov_b64 exec, 0xffff")
            e(f"v_subrev_u32 v252, s{sTS}, v252")
            e(f"v_lshlrev_b32 v0, 2, v{vLane}")
            e(f"s_add_u32 s{sT0}, s{sT0}, 0x10000")
            e(f"buffer_store_dword v252, v0, {srd(sWS)}, s{sT0} offen")
    e("L_end:")
    e("s_endpgm")
    e('.section .rodata,"a"')
    e(".p2align 6")
    e(f".amdhsa_kernel {o.name}_kernel")
    e(f"  .amdhsa_next_free_vgpr {NV}")
    e("  .amdhsa_next_free_sgpr 102")
    e(f"  .amdhsa_accum_offset {NV}")
    e("  .amdhsa_group_segment_fixed_size 0")
    e("  .amdhsa_kernarg_size 64")
    e("  .amdhsa_user_sgpr_count 2")
    e("  .amdhsa_user_sgpr_kernarg_segment_ptr 1")
    e("  .amdhsa_system_sgpr_workgroup_id_x 1")
    e(".end_amdhsa_kernel")
    return "\n".join(x for x in out if x is not None) + "\n"

if __name__ == "__main__":
    o = Opt()
    path = sys.argv[1]
    for a in sys.argv[2:]:
        k, v = a.split("=")
        assert hasattr(o, k), k
        setattr(o, k, int(v))
    open(path, "w").write(gen(o))
```

```python
import sys, struct
def f2u(x): return struct.unpack('<I', struct.pack('<f', x))[0]

NAME = "standalone__self_sup_conv_stem_hubert__speech"
HDR = """; Kernarg layout for this problem (64 bytes, ptrs only, base s[0:1]):
"""

class Opt:
    stamp = 0
    xnt = 2
    tnt = 9
    wnt = 0
    hnt = 0
    lo = 0
    rt = 0
    pd = 1
    sx = 0
    wb = 0
    tch = 0
    tn1 = 1
    tn2 = 0
    l1 = 0
    bnt = 0
    pt = -1
    tf = 1
    wf = 0
    eps = 1
    ep = 9
    rs = 128
    slp = 0
    b1 = 1
    w1 = 0
    l0 = 9
    lpi = 6
    ppi = 3
    p0 = 10
    dbg = 0
    inv = 0
    dsc1 = 1
    prio = 1
    osc1 = 0
    ont = 0
    warm = 0
    name = NAME

L = 7985
TS = 250
XBYTES = 2*16000*256*2
WBYTES = 31*256*256*2
OBYTES = 2*L*256*2
XBASE = 65536
XBUF = 34816
XCH = XBASE + 2*XBUF
LDS_BYTES = XCH + 16384
WS_HS = 0x100000
WS_S = 0x400000
SIMG = 34816
WS_BYTES = 0x1000000

S1 = 0
S2 = 64
FR = 128
WF = 220
WF2 = 248
vAlo, vAhi, vWrd = 228, 229, 230
PB, PG, PE = 232, 234, 236
vLane, vI, vG, vT0, vT1, vT2, vT3 = 238, 239, 240, 241, 242, 243, 244
vOut, vXw, vXr = 245, 246, 247
vEw, vEr = 253, 254
NV = 256
hX0, hX1, hW0, hW1, hLin, hA0, hA1, hB = 8, 9, 10, 11, 12, 13, 14, 15
hT = 16
hD = 32
sX, sW, sO, sWS, sDB, sB, sGA, sBE = 4, 8, 12, 16, 20, 24, 28, 32
sWave, sB_, sTile, sChg, sBt, sRho, sH, sIt, sHook = 36, 37, 38, 39, 40, 41, 42, 43, 44
sT0, sT1, sT2, sT3 = 45, 46, 47, 48
sRec = 49
sWm0, sXm0, sWoff, sWstr, sWb0, sWb1, sXb0, sXb1, sWinc, sXinc, sXoff, sXstr = range(50, 62)
sKc, sP, sSimg, sMsk, sHs0, sHs1 = 62, 63, 64, 65, 66, 67
sXs, sWsrc = 72, 76
sMask = 56
sSign, sO1, sO2, sO3, sRn = 84, 85, 86, 87, 54
sTS = 88

def F(u): return f"v[{FR+4*u}:{FR+4*u+3}]"
def A(s): return f"v[{S1+4*s}:{S1+4*s+3}]"
def Wr(k): return WF2 if k == 2 else WF+4*k
def Wf(k): return f"v[{Wr(k)}:{Wr(k)+3}]"
def srd(r): return f"s[{r}:{r+3}]"
def P(r): return f"v[{r}:{r+1}]"
def Q4(r): return f"v[{r}:{r+3}]"

def NT(x): return ' nt' if x else ''
def gen(o):
    out = []
    e = out.append
    e(HDR + f"; @launch grid=(256,1,1) block=(512,1,1) lds={LDS_BYTES}")
    e('.amdgcn_target "amdgcn-amd-amdhsa--gfx950"')
    e(".text")
    e(f".globl {o.name}_kernel")
    e(".p2align 8")
    e(f".type {o.name}_kernel,@function")
    e(f"{o.name}_kernel:")
    e("s_cmp_ge_u32 s2, 256")
    e("s_cbranch_scc1 L_end")
    def stamp(k):
        if o.stamp: e(f"{'s_memrealtime' if o.rt else 's_memtime'} s[{sTS+2*k}:{sTS+2*k+1}]")
    if o.stamp: e(f"s_memrealtime s[{sTS+10}:{sTS+11}]")
    stamp(0)
    e(f"s_load_dwordx4 s[{sXs}:{sXs+3}], s[0:1], 0")
    e(f"v_lshrrev_b32 v1, 6, v0")
    e(f"v_and_b32 v{vLane}, 63, v0")
    e(f"v_readfirstlane_b32 s{sWave}, v1")
    e(f"s_bfe_u32 s{sB_}, s2, 0x10002")
    e(f"s_and_b32 s{sTile}, s2, 3")
    e(f"s_lshl_b32 s{sTile}, s{sTile}, 2")
    e(f"s_bfe_u32 s{sT0}, s2, 0x20003")
    e(f"s_or_b32 s{sTile}, s{sTile}, s{sT0}")
    e(f"s_lshr_b32 s{sChg}, s2, 5")
    e(f"s_load_dwordx2 s[{sWS}:{sWS+1}], s[0:1], 56")
    e(f"s_load_dwordx2 s[{sDB}:{sDB+1}], s[0:1], 48")
    e(f"s_cmp_lt_u32 s{sWave}, 4")
    e("s_cbranch_scc1 L_compute")
    e(f"s_and_b32 s{sRho}, s{sWave}, 1")
    e(f"s_mul_i32 s{sT0}, s{sB_}, {16000*512}")
    e(f"s_mul_i32 s{sT1}, s{sTile}, {4*TS*512}")
    e(f"s_add_u32 s{sT0}, s{sT0}, s{sT1}")
    e(f"s_cmp_ge_u32 s{sWave}, 6")
    e("s_cbranch_scc1 L_trans")
    e(f"s_lshl_b32 s{sT1}, s{sRho}, 14")
    e(f"s_add_u32 s{sT0}, s{sT0}, s{sT1}")
    e(f"v_lshrrev_b32 v1, 3, v{vLane}")
    e(f"v_and_b32 v2, 7, v{vLane}")
    e(f"v_lshlrev_b32 v2, 4, v2")
    e(f"v_lshl_add_u32 v4, v1, 11, v2")
    e(f"v_add_u32 v{hX0}, s{sT0}, v4")
    e(f"v_xor_b32 v{hX1}, 32, v{hX0}")
    e(f"v_lshrrev_b32 v1, 2, v{vLane}")
    e(f"v_and_b32 v3, 48, v2")
    e(f"v_and_b32 v5, 32, v{vLane}")
    e(f"v_xor_b32 v5, v5, v3")
    e(f"v_lshl_add_u32 v5, v1, 9, v5")
    e(f"s_lshl_b32 s{sKc}, s{sChg}, 6")
    e(f"v_add_u32 v{hW0}, s{sKc}, v5")
    e(f"v_add_u32 v{hW1}, 8192, v{hW0}")
    e(f"s_lshl_b32 s{sWm0}, s{sRho}, 11")
    e(f"s_lshl_b32 s{sXm0}, s{sRho}, 10")
    e(f"s_add_u32 s{sXm0}, s{sXm0}, {XBASE}")
    e(f"s_mov_b32 s{sXb0}, 0")
    e(f"s_lshl_b32 s{sWb0}, s{sRho}, 14")
    e(f"s_mov_b32 s{sXstr}, 32768")
    e(f"s_mov_b32 s{sWstr}, 524288")
    def mk_srds():
        e("s_waitcnt lgkmcnt(0)")
        e(f"s_mov_b32 s{sWsrc}, s{sXs+2}")
        e(f"s_and_b32 s{sWsrc+1}, s{sXs+3}, 0xffff")
        e(f"s_mov_b32 s{sWsrc+2}, {WBYTES}")
        e(f"s_mov_b32 s{sWsrc+3}, 0x00020000")
        e(f"s_and_b32 s{sXs+1}, s{sXs+1}, 0xffff")
        e(f"s_mov_b32 s{sXs+2}, {XBYTES}")
        e(f"s_mov_b32 s{sXs+3}, 0x00020000")
    mk_srds()
    if o.stamp: e("s_memtime s[90:91]")
    log = []
    lab = [0]
    pro = [1]
    def xdma(par, tag, fl=""):
        for k in range(17):
            if k == 16:
                lab[0] += 1
                e(f"s_cmp_lg_u32 s{sRho}, 0")
                e(f"s_cbranch_scc1 L_sk{lab[0]}")
            e(f"s_add_u32 m0, s{sXm0}, {par*XBUF + k*2112}")
            if k == 0: e(f"s_mov_b32 s{sXoff}, s{sXb1 if par else sXb0}")
            else: e(f"s_add_u32 s{sXoff}, s{sXoff}, s{sXstr}")
            e(f"buffer_load_dwordx4 v{hX1 if (k >> 2) & 1 else hX0}, {srd(sXs)}, s{sXoff} offen{fl or NT(o.xnt == 1 or (o.xnt == 2 and pro[0]))} lds")
            log.append((tag, k < 16))
        e(f"L_sk{lab[0]}:")
    def wdma(par, i0, tag, fl=""):
        for i in range(i0, i0+4):
            e(f"s_add_u32 m0, s{sWm0}, {(par*8 + i)*4096}")
            if i == 0: e(f"s_mov_b32 s{sWoff}, s{sWb1 if par else sWb0}")
            else: e(f"s_add_u32 s{sWoff}, s{sWoff}, s{sWstr}")
            e(f"buffer_load_dwordx4 v{hW0}, {srd(sWsrc)}, s{sWoff} offen{fl or NT(o.wnt)} lds")
            e(f"s_add_u32 m0, m0, 1024")
            e("s_nop 0")
            e(f"buffer_load_dwordx4 v{hW1}, {srd(sWsrc)}, s{sWoff} offen{fl or NT(o.wnt)} lds")
            log.extend([(tag, True)]*2)
    def wait_for(tags):
        idx = [i for i, (t, c) in enumerate(log) if t in tags]
        for t in tags: assert any(t == x for x, _ in log), t
        n = sum(1 for t, c in log[max(idx)+1:] if c)
        assert n <= 63
        return n
    def adv():
        e(f"s_add_u32 s{sWb0}, s{sWb0}, s{sWinc}"); e(f"s_add_u32 s{sWb1}, s{sWb1}, s{sWinc}")
        e(f"s_add_u32 s{sXb0}, s{sXb0}, s{sXinc}"); e(f"s_add_u32 s{sXb1}, s{sXb1}, s{sXinc}")
    if o.wf: wdma(0, 0, ("w", 0, 0)); xdma(0, ("x", 0))
    else: xdma(0, ("x", 0)); wdma(0, 0, ("w", 0, 0))
    if o.stamp: e("s_memtime s[92:93]")
    if o.b1 == 0: e("s_barrier")
    e(f"s_add_u32 s{sXb1}, s{sXb0}, 512")
    e(f"s_add_u32 s{sWb1}, s{sWb0}, 131072")
    e(f"s_mov_b32 s{sWinc}, 32768")
    e(f"s_mov_b32 s{sXinc}, 128")
    xdma(1, ("x", 1)); wdma(0, 4, ("w", 0, 1))
    if o.b1 == 1: e("s_barrier")
    wdma(1, 0, ("w", 1, 0))
    if o.b1 == 2: e("s_barrier")
    if o.w1: wdma(1, 4, ("w", 1, 1))
    if o.b1 == 3: e("s_barrier")
    e(f"s_waitcnt vmcnt({wait_for([('x', 0), ('w', 0, 0)])})")
    if o.stamp: e("s_memtime s[94:95]")
    e("s_barrier")
    if not o.w1: wdma(1, 4, ("w", 1, 1))
    adv()
    pro[0] = 0
    def interval(c, j, fl):
        par = c & 1
        need = [("x", c+1), ("w", c, 1)] if j == 3 else [("w", c+1, 0)]
        n = wait_for(need)
        e(f"s_waitcnt vmcnt({n})")
        e("s_barrier")
        if j == 3:
            xdma(par, ("x", c+2), fl); wdma(par, 0, ("w", c+2, 0), fl)
        else:
            wdma(par, 4, ("w", c+2, 1), fl)
        return n
    e(f"s_mov_b32 s{sIt}, 0")
    e("L_dloop1:")
    e(f"s_cmp_lg_u32 s{sIt}, 3")
    e("s_cbranch_scc1 L_dl1")
    for r in (sWb0, sWb1): e(f"s_add_u32 s{r}, s{r}, 131072")
    for r in (sXb0, sXb1): e(f"s_add_u32 s{r}, s{r}, 512")
    e("L_dl1:")
    n1 = [interval(c, j, "") for c in (0, 1) for j in (3, 7)]
    assert n1 == [16, 32, 16, 32], n1
    adv()
    e(f"s_add_u32 s{sIt}, s{sIt}, 1")
    e(f"s_cmp_lt_u32 s{sIt}, 7")
    e("s_cbranch_scc1 L_dloop1")
    e(f"s_mov_b32 s{sXs}, s{sWS}")
    e(f"s_and_b32 s{sXs+1}, s{sWS+1}, 0xffff")
    e(f"s_mov_b32 s{sXs+2}, {WS_BYTES}")
    for q in range(3): e(f"s_mov_b32 s{sWsrc+q}, s{sXs+q}")
    e(f"v_lshlrev_b32 v{hW0}, 4, v{vLane}")
    e(f"s_lshl_b32 s{sT0}, s{sRho}, 10")
    e(f"v_add_u32 v{hX0}, s{sT0}, v{hW0}")
    e(f"v_add_u32 v{hX1}, s{sT0}, v{hW0}")
    e(f"v_add_u32 v{hW1}, 1024, v{hW0}")
    e(f"s_lshl_b32 s{sT1}, s{sB_}, 4")
    e(f"s_or_b32 s{sT1}, s{sT1}, s{sTile}")
    e(f"s_mul_i32 s{sXb0}, s{sT1}, {8*SIMG}")
    e(f"s_add_u32 s{sXb0}, s{sXb0}, {WS_S}")
    e(f"s_add_u32 s{sXb1}, s{sXb0}, {4*SIMG}")
    e(f"s_mov_b32 s{sXinc}, {SIMG}")
    e(f"s_mov_b32 s{sXstr}, 2048")
    e(f"s_lshl_b32 s{sWb0}, s{sChg}, 18")
    e(f"s_lshl_b32 s{sT0}, s{sRho}, 17")
    e(f"s_add_u32 s{sWb0}, s{sWb0}, s{sT0}")
    e(f"s_add_u32 s{sWb0}, s{sWb0}, {WS_HS}")
    e(f"s_add_u32 s{sWb1}, s{sWb0}, 16384")
    e(f"s_mov_b32 s{sWinc}, 32768")
    e(f"s_mov_b32 s{sWstr}, 2048")
    e("L_dloop2:")
    n2 = [interval(c, j, " sc1") for c in (2, 3) for j in (3, 7)]
    assert n2 == n1
    adv()
    e(f"s_add_u32 s{sIt}, s{sIt}, 1")
    e(f"s_cmp_lt_u32 s{sIt}, 11")
    e("s_cbranch_scc1 L_dloop2")
    for n in (16, 8, 0):
        e(f"s_waitcnt vmcnt({n})")
        e("s_barrier")
    if o.stamp:
        e(f"s_lshl_b32 s{sT0}, s2, 2")
        e(f"s_add_u32 s{sT0}, s{sT0}, s{sRho}")
        e(f"s_lshl_b32 s{sT0}, s{sT0}, 6")
        e(f"s_add_u32 s{sT0}, s{sT0}, 0x40020")
        e("s_mov_b64 exec, 1")
        e("v_mov_b32 v0, 0")
        for k in range(3):
            e(f"s_sub_u32 s{sT1}, s{90+2*k}, s{sTS}")
            e(f"v_mov_b32 v1, s{sT1}")
            e(f"buffer_store_dword v1, v0, {srd(sXs)}, s{sT0} offen offset:{4*k}")
    e("s_endpgm")
    e("L_trans:")
    log = []
    e(f"s_lshl_b32 s{sT1}, s{sRho}, 9")
    e(f"s_add_u32 s{sT0}, s{sT0}, s{sT1}")
    e(f"s_add_u32 s{sT0}, s{sT0}, 1024")
    e(f"v_lshrrev_b32 v1, 3, v{vLane}")
    e(f"v_and_b32 v2, 7, v{vLane}")
    e(f"v_lshlrev_b32 v2, 4, v2")
    e(f"v_lshl_add_u32 v2, v1, 11, v2")
    e(f"v_add_u32 v{hA0}, s{sT0}, v2")
    e(f"v_lshrrev_b32 v1, 5, v{vLane}")
    e(f"v_lshlrev_b32 v{hLin}, 4, v{vLane}")
    def urg(u):
        e(f"s_add_u32 s{sT1}, s{sChg}, {8*u}")
        e(f"s_mul_i32 s{sT2}, s{sT1}, 241")
        e(f"s_lshr_b32 s{sT2}, s{sT2}, 13")
        e(f"s_mul_i32 s{sT3}, s{sT2}, 34")
        e(f"s_sub_u32 s{sT1}, s{sT1}, s{sT3}")
    e(f"s_lshr_b32 s{sT2}, s2, 5")
    e(f"s_lshl_b32 s{sHs0}, s{sT2}, 19")
    e(f"s_lshl_b32 s{sHs1}, s{sT2}, 11")
    e(f"s_bfe_u32 s{sT2}, s2, 0x10004")
    e(f"s_lshl_b32 s{sT3}, s{sT2}, 17")
    e(f"s_add_u32 s{sHs0}, s{sHs0}, s{sT3}")
    e(f"s_lshl_b32 s{sT3}, s{sT2}, 14")
    e(f"s_add_u32 s{sHs1}, s{sHs1}, s{sT3}")
    e(f"s_and_b32 s{sT2}, s2, 15")
    e(f"s_lshl_b32 s{sT2}, s{sT2}, 11")
    e(f"s_add_u32 s{sHs0}, s{sHs0}, s{sT2}")
    e(f"s_lshl_b32 s{sT2}, s{sRho}, 10")
    e(f"s_add_u32 s{sHs0}, s{sHs0}, s{sT2}")
    mk_srds()
    units = [("s", u) for u in range(17)] + [("h", k) for k in range(4)]
    NU = len(units)
    hl = [(n, h) for n in range(17, 21) for h in (0, 1)]
    loads = [(n, 0) for n in range(4, 13)] + hl + [(n, 0) for n in range(13, 17)] + [(n, 1) for n in range(17)] + [(n, 0) for n in range(4)]
    if o.lo == 1: loads = [(n, 0) for n in range(4, 17)] + hl + [(n, 1) for n in range(17)] + [(n, 0) for n in range(4)]
    if o.lo == 2: loads = [(n, 0) for n in range(4, 9)] + hl + [(n, 0) for n in range(9, 17)] + [(n, 1) for n in range(17)] + [(n, 0) for n in range(4)]
    if o.lo == 3: loads = [(n, 0) for n in range(4, 9)] + [(18, 0)] + [(n, 0) for n in range(9, 13)] + [(19, 0), (20, 0)] + [(n, 0) for n in range(13, 17)] + [(n, 1) for n in range(17, 21)] + [(n, 1) for n in range(17)] + [(17, 0)] + [(n, 0) for n in range(4)]
    if o.lo == 4: loads = [(18, 0)] + [(n, 0) for n in range(4, 9)] + [(19, 0)] + [(n, 0) for n in range(9, 13)] + [(20, 0)] + [(n, 0) for n in range(13, 17)] + [(n, 1) for n in range(17)] + [(n, 1) for n in range(17, 21)] + [(17, 0)] + [(n, 0) for n in range(4)]
    if o.lo == 5: loads = [(n, 0) for n in range(4, 17)] + [(n, 1) for n in range(17)] + [(n, 0) for n in range(4)] + [(18, 0), (19, 0), (20, 0)] + [(n, 1) for n in range(17, 21)] + [(17, 0)]
    if o.lo == 6: loads = [(18, 0)] + [(n, 0) for n in range(4, 17)] + [(19, 0), (20, 0)] + [(n, 1) for n in range(17)] + [(n, 0) for n in range(4)] + [(n, 1) for n in range(17, 21)] + [(17, 0)]
    assert sorted(loads) == sorted((n, h) for n in range(21) for h in (0, 1))
    order = (list(range(17, 21)) + list(range(4, 17)) if o.lo < 3 else list(range(4, 17)) + [18, 19, 20, 17]) + list(range(4))
    def uload(n, h):
        kind, k = units[n]; d = hD + 8*n + 4*h
        if kind == "s":
            urg(k)
            e(f"s_lshl_b32 s{sT0}, s{sT1}, 14")
            e(f"s_lshl_b32 s{sT2}, s{sT2}, 7")
            e(f"s_add_u32 s{sT0}, s{sT0}, s{sT2}")
            if h == 0: e(f"s_add_u32 s{sT0}, s{sT0}, 1024")
            e(f"buffer_load_dwordx4 {Q4(d)}, v{hA0}, {srd(sXs)}, s{sT0} offen{NT(o.bnt or (h == 0 and 4 <= k < 4 + o.tnt))}")
        else:
            e(f"s_add_u32 s{sT0}, s{sHs0}, {k*32768 + h*262144}")
            e(f"buffer_load_dwordx4 {Q4(d)}, v{hLin}, {srd(sWsrc)}, s{sT0} offen{NT(o.hnt)}")
        log.append((("ul", n, h), True))
    def uproc(n):
        kind, k = units[n]; d = hD + 8*n; t = hT; ob = hT + 4 + 4*(n & 1)
        e(f"s_waitcnt vmcnt({wait_for([('ul', n, 0), ('ul', n, 1)])})")
        ng = "-" if kind == "h" else ""
        for q in range(4):
            a, b = d+q, d+4+q
            e(f"v_lshlrev_b32 v{t}, 16, v{a}")
            e(f"v_lshlrev_b32 v{t+1}, 16, v{b}")
            e(f"v_and_b32 v{t+2}, s{sMsk}, v{a}")
            e(f"v_and_b32 v{t+3}, s{sMsk}, v{b}")
            e(f"v_add_f32 v{t}, {ng}v{t}, {ng}v{t+1}")
            e(f"v_add_f32 v{t+2}, {ng}v{t+2}, {ng}v{t+3}")
            e(f"v_cvt_pk_bf16_f32 v{ob+q}, v{t}, v{t+2}")
        if kind == "s":
            urg(k)
            e(f"s_mul_i32 s{sT0}, s{sT2}, {SIMG}")
            e(f"s_add_u32 s{sT0}, s{sT0}, s{sSimg}")
            e(f"s_and_b32 s{sT2}, s{sT1}, 8")
            e(f"s_lshl_b32 s{sT2}, s{sT2}, 2")
            e(f"v_xor_b32 v{hB}, s{sT2}, v{hLin}")
            e(f"s_lshl_b32 s{sT1}, s{sT1}, 10")
            e(f"s_add_u32 s{sT0}, s{sT0}, s{sT1}")
            e(f"buffer_store_dwordx4 {Q4(ob)}, v{hB}, {srd(sWS)}, s{sT0} offen sc1")
        else:
            e(f"s_add_u32 s{sT0}, s{sHs1}, {k*32768}")
            e(f"buffer_store_dwordx4 {Q4(ob)}, v{hX1}, {srd(sWS)}, s{sT0} offen sc1")
        log.append((("us", n), True))
    e("s_barrier")
    li = 0
    def some_loads(cnt):
        nonlocal li
        for n, h in loads[li:li+cnt]: uload(n, h)
        li = min(len(loads), li+cnt)
    some_loads(o.l0)
    for r, n in ((sWS, WS_BYTES), (sDB, 256)):
        e(f"s_and_b32 s{r+1}, s{r+1}, 0xffff")
        e(f"s_mov_b32 s{r+2}, {n}")
        e(f"s_mov_b32 s{r+3}, 0x00020000")
    e(f"s_lshl_b32 s{sBt}, s{sB_}, 4")
    e(f"s_or_b32 s{sBt}, s{sBt}, s{sTile}")
    e(f"s_mov_b32 s{sMsk}, 0xffff0000")
    e(f"s_lshl_b32 s{sT1}, s{sBt}, 1")
    e(f"s_add_u32 s{sT1}, s{sT1}, s{sRho}")
    e(f"s_mul_i32 s{sSimg}, s{sT1}, {4*SIMG}")
    e(f"s_add_u32 s{sSimg}, s{sSimg}, {WS_S}")
    e(f"v_bfe_u32 v2, v{vLane}, 2, 3")
    e(f"v_lshlrev_b32 v2, 18, v2")
    e(f"v_lshl_add_u32 v2, v1, 6, v2")
    e(f"v_and_b32 v3, 3, v{vLane}")
    e(f"v_lshl_add_u32 v2, v3, 4, v2")
    e(f"s_bfe_u32 s{sT1}, s2, 0x10001")
    e(f"s_lshl_b32 s{sT1}, s{sT1}, 5")
    e(f"v_xor_b32 v{hX1}, s{sT1}, v2")
    e(f"s_bfe_u32 s{sT2}, s2, 0x10003")
    e(f"s_lshl_b32 s{sT2}, s{sT2}, 17")
    e(f"s_add_u32 s{sHs1}, s{sHs1}, s{sT2}")
    e(f"s_and_b32 s{sT2}, s2, 7")
    e(f"s_lshl_b32 s{sT2}, s{sT2}, 8")
    e(f"s_add_u32 s{sHs1}, s{sHs1}, s{sT2}")
    e(f"s_lshl_b32 s{sT2}, s{sRho}, 7")
    e(f"s_add_u32 s{sHs1}, s{sHs1}, s{sT2}")
    e(f"s_add_u32 s{sHs1}, s{sHs1}, {WS_HS}")
    e(f"s_lshl_b32 s{sRec}, s{sB_}, 3")
    e(f"s_or_b32 s{sRec}, s{sRec}, s{sChg}")
    e(f"s_lshl_b32 s{sRec}, s{sRec}, 13")
    e(f"s_lshl_b32 s{sT2}, s{sRho}, 4")
    e(f"s_add_u32 s{sT2}, s{sT2}, s{sTile}")
    e(f"s_lshl_b32 s{sT2}, s{sT2}, 7")
    e(f"s_add_u32 s{sT2}, s{sT2}, s{sRec}")
    e(f"v_and_b32 v6, 31, v{vLane}")
    e(f"v_lshlrev_b32 v6, 2, v6")
    e(f"v_lshl_add_u32 v6, v1, 12, v6")
    e(f"v_mov_b32 v7, -1")
    e("s_barrier")
    e(f"buffer_store_dword v7, v6, {srd(sWS)}, s{sT2} offen sc1")
    log.append(("rst", True))
    m = -1
    pi = 0
    while pi < NU:
        if m + 1 >= o.l1: some_loads(o.lpi)
        if m + 1 == o.pt:
            tl = [(n, 0) for n in range(9, 17)] + [(n, 1) for n in range(17)]
            e(f"s_waitcnt vmcnt({wait_for([('ul', n, h) for n, h in tl])})")
            for n, h in tl:
                urg(n)
                e(f"s_lshl_b32 s{sT0}, s{sT1}, 14")
                e(f"s_lshl_b32 s{sT2}, s{sT2}, 7")
                e(f"s_add_u32 s{sT0}, s{sT0}, s{sT2}")
                e(f"buffer_load_dword v{hA1}, v{hA0}, {srd(sXs)}, s{sT0} offen offset:{0 if h else 1024}{('', ' sc0', ' sc1')[o.tf]}")
                log.append((("touch", n, h), True))
        if m + 1 >= o.p0:
            assert li == len(loads)
            for n in order[pi:pi+o.ppi]: uproc(n)
            pi += o.ppi
        e("s_barrier"); m += 1
    for _ in range(2):
        e("s_barrier"); m += 1
    e("s_waitcnt vmcnt(0)")
    e("s_barrier"); m += 1
    e(f"s_cmp_lg_u32 s{sWave}, 6")
    e("s_cbranch_scc1 L_end2")
    e("s_mov_b64 exec, 1")
    e("v_mov_b32 v6, 0")
    e("v_mov_b32 v7, 1")
    e(f"buffer_atomic_add v7, v6, {srd(sDB)}, 0 offen sc1")
    lastm = 25
    assert m < lastm
    e(f"s_mov_b32 s{sIt}, {m}")
    e("L_tw:")
    e("s_barrier")
    e(f"s_add_u32 s{sIt}, s{sIt}, 1")
    e(f"s_cmp_lt_u32 s{sIt}, {lastm}")
    e("s_cbranch_scc1 L_tw")
    e(f"buffer_load_dword v7, v6, {srd(sDB)}, 0 offen sc1")
    e("s_barrier")
    e("s_barrier")
    e(f"s_mov_b32 s{sT3}, 0")
    e("L_tp:")
    e("s_waitcnt vmcnt(0)")
    e(f"v_readfirstlane_b32 s{sT2}, v7")
    e(f"s_add_u32 s{sT3}, s{sT3}, 1")
    e(f"s_cmp_ge_u32 s{sT2}, 256")
    e("s_cbranch_scc1 L_tq")
    e(f"s_cmp_ge_u32 s{sT3}, 0x20000")
    e("s_cbranch_scc1 L_tq")
    e(f"buffer_load_dword v7, v6, {srd(sDB)}, 0 offen sc1")
    e("s_branch L_tp")
    e("L_tq:")
    e("s_barrier")
    e("L_end2:")
    e("s_endpgm")
    e(".p2align 6")
    e("L_compute:")
    if o.tch:
        e(f"s_mul_i32 s{sT0}, s{sB_}, {16000*512}")
        e(f"s_mul_i32 s{sT1}, s{sTile}, {4*TS*512}")
        e(f"s_add_u32 s{sT0}, s{sT0}, s{sT1}")
        e(f"s_lshl_b32 s{sT1}, s{sChg}, 16")
        e(f"s_add_u32 s{sT0}, s{sT0}, s{sT1}")
        e(f"s_and_b32 s{sT1}, s{sWave}, 1")
        e(f"s_lshl_b32 s{sT2}, s{sT1}, 7")
        e(f"s_add_u32 s{sT0}, s{sT0}, s{sT2}")
        e(f"v_and_b32 v2, 31, v{vLane}")
        e(f"v_lshrrev_b32 v3, 5, v{vLane}")
        e(f"v_lshlrev_b32 v3, 9, v3")
        e(f"v_lshl_add_u32 v2, v2, 11, v3")
        e(f"v_add_u32 v{FR}, s{sT0}, v2")
        e(f"s_lshr_b32 s{sT0}, s2, 5")
        e(f"s_lshl_b32 s{sT0}, s{sT0}, 19")
        e(f"s_bfe_u32 s{sT2}, s2, 0x20003")
        e(f"s_lshl_b32 s{sT2}, s{sT2}, 13")
        e(f"s_add_u32 s{sT0}, s{sT0}, s{sT2}")
        e(f"s_lshl_b32 s{sT1}, s{sT1}, 17")
        e(f"s_add_u32 s{sT0}, s{sT0}, s{sT1}")
        e(f"v_lshlrev_b32 v2, 7, v{vLane}")
        e(f"v_add_u32 v{FR+1}, s{sT0}, v2")
        e(f"s_bfe_u32 s{sT3}, s{sWave}, 0x10001")
        e(f"s_lshl_b32 s{sT3}, s{sT3}, 8")
        mk_srds()
        for q in range(4):
            e(f"s_mov_b32 s{sX+q}, s{sXs+q}")
            e(f"s_mov_b32 s{sW+q}, s{sWsrc+q}")
        e(f"s_cmp_ge_u32 s{sWave}, 2")
        e("s_cbranch_scc1 L_tc1")
        e(f"buffer_load_dword v231, v{FR+1}, {srd(sW)}, 0 offen")
        e("s_branch L_tc2")
        e("L_tc1:")
        e(f"buffer_load_dword v231, v{FR}, {srd(sX)}, 0 offen{NT(o.tn1)}")
        e("L_tc2:")
        e(f"s_mov_b32 s{sSign}, s{sT3}")
    e(f"s_bfe_u32 s{sRho}, s{sWave}, 0x10001")
    e(f"s_and_b32 s{sH}, s{sWave}, 1")
    e(f"s_lshl_b32 s{sRec}, s{sB_}, 3")
    e(f"s_or_b32 s{sRec}, s{sRec}, s{sChg}")
    e(f"s_lshl_b32 s{sRec}, s{sRec}, 1")
    e(f"s_or_b32 s{sRec}, s{sRec}, s{sH}")
    e(f"s_lshl_b32 s{sRec}, s{sRec}, 12")
    if o.prio: e(f"s_setprio {o.prio}")
    e(f"s_load_dwordx2 s[{sB}:{sB+1}], s[0:1], 16")
    e(f"s_load_dwordx2 s[{sGA}:{sGA+1}], s[0:1], 24")
    e(f"s_load_dwordx2 s[{sBE}:{sBE+1}], s[0:1], 32")
    e(f"s_load_dwordx2 s[{sO}:{sO+1}], s[0:1], 40")
    for r, n in ((sO, OBYTES), (sWS, WS_BYTES), (sDB, 256), (sB, 512), (sGA, 512), (sBE, 512)):
        e(f"s_mov_b32 s{r+2}, {n}")
        e(f"s_mov_b32 s{r+3}, 0x00020000")
    e(f"v_and_b32 v{vI}, 15, v{vLane}")
    e(f"v_lshrrev_b32 v{vG}, 4, v{vLane}")
    e(f"s_lshl_b32 s{sT0}, s{sRho}, 6")
    e(f"s_add_u32 s{sT0}, s{sT0}, {XBASE}")
    e(f"s_movk_i32 s{sT1}, 2112")
    for dst, add in ((vAlo, 0), (vAhi, 1)):
        e(f"v_add_u32 v{vT1}, {add}, v{vI}")
        e(f"v_bfe_u32 v{vT0}, v{vT1}, 2, 1")
        e(f"v_lshlrev_b32 v{vT0}, 1, v{vT0}")
        e(f"v_xor_b32 v{vT0}, v{vT0}, v{vG}")
        e(f"v_lshlrev_b32 v{vT0}, 4, v{vT0}")
        e(f"v_mad_u32_u24 v{dst}, v{vT1}, s{sT1}, v{vT0}")
        e(f"v_add_u32 v{dst}, s{sT0}, v{dst}")
    e(f"v_lshrrev_b32 v{vT0}, 2, v{vI}")
    e(f"v_lshl_add_u32 v{vT1}, v{vG}, 3, v{vT0}")
    e(f"v_and_b32 v{vT2}, 1, v{vG}")
    e(f"v_xor_b32 v{vT2}, s{sH}, v{vT2}")
    e(f"v_lshlrev_b32 v{vT2}, 5, v{vT2}")
    e(f"v_lshl_add_u32 v{vT1}, v{vT1}, 6, v{vT2}")
    e(f"v_and_b32 v{vT2}, 3, v{vLane}")
    e(f"v_lshl_add_u32 v{vWrd}, v{vT2}, 3, v{vT1}")
    e(f"s_lshl_b32 s{sT0}, s{sRho}, 11")
    e(f"v_add_u32 v{vWrd}, s{sT0}, v{vWrd}")
    e(f"s_lshl_b32 s{sT0}, s{sChg}, 6")
    e(f"s_lshl_b32 s{sT1}, s{sH}, 5")
    e(f"s_add_u32 s{sT0}, s{sT0}, s{sT1}")
    e(f"v_lshlrev_b32 v{vT0}, 3, v{vG}")
    e(f"v_add_u32 v{vT0}, s{sT0}, v{vT0}")
    e(f"s_mul_i32 s{sT1}, s{sB_}, {L}")
    e(f"s_mul_i32 s{sT2}, s{sTile}, {2*TS}")
    e(f"s_add_u32 s{sT1}, s{sT1}, s{sT2}")
    e(f"s_lshl_b32 s{sT2}, s{sRho}, 4")
    e(f"s_add_u32 s{sT1}, s{sT1}, s{sT2}")
    e(f"s_lshl_b32 s{sT1}, s{sT1}, 9")
    e(f"s_add_u32 s{sT1}, s{sT1}, s{sT0}")
    e(f"v_and_b32 v{vT1}, 1, v{vG}")
    e(f"v_lshlrev_b32 v{vT1}, 9, v{vT1}")
    e(f"v_lshrrev_b32 v{vT2}, 1, v{vG}")
    e(f"v_lshl_add_u32 v{vT1}, v{vT2}, 4, v{vT1}")
    e(f"v_lshl_add_u32 v{vOut}, v{vI}, 14, v{vT1}")
    e(f"v_add_u32 v{vOut}, s{sT1}, v{vOut}")
    e(f"v_lshlrev_b32 v{vT1}, 4, v{vLane}")
    e(f"s_lshl_b32 s{sT1}, s{sWave}, 12")
    e(f"s_add_u32 s{sT2}, s{sT1}, {XCH}")
    e(f"v_add_u32 v{vXw}, s{sT2}, v{vT1}")
    e(f"s_xor_b32 s{sT2}, s{sT1}, 0x2000")
    e(f"s_add_u32 s{sT2}, s{sT2}, {XCH}")
    e(f"v_add_u32 v{vXr}, s{sT2}, v{vT1}")
    e(f"s_lshl_b32 s{sT1}, s{sWave}, 13")
    e(f"v_add_u32 v{vEw}, s{sT1}, v{vT1}")
    e(f"v_xor_b32 v{vEr}, 0x4000, v{vEw}")
    e(f"s_mov_b32 s{sIt}, 0")
    e("s_waitcnt lgkmcnt(0)")
    for r in (sO, sWS, sDB, sB, sGA, sBE): e(f"s_and_b32 s{r+1}, s{r+1}, 0xffff")
    e(f"buffer_load_dwordx2 {P(PB)}, v{vT0}, {srd(sB)}, 0 offen")
    e(f"buffer_load_dwordx2 {P(PG)}, v{vT0}, {srd(sGA)}, 0 offen")
    e(f"buffer_load_dwordx2 {P(PE)}, v{vT0}, {srd(sBE)}, 0 offen")
    e(f"s_cmp_eq_u32 s{sTile}, 15")
    e(f"s_mov_b32 s{sRn}, 0")
    e(f"s_cselect_b32 s{sT1}, 3, 8")
    e(f"s_cselect_b32 s{sT2}, 0, 2")
    e(f"s_cselect_b32 s{sT3}, {f2u(1.0/245)}, s{sRn}")
    e(f"s_cselect_b32 s{sO2}, {f2u(1.0/240)}, s{sRn}")
    e(f"s_cmp_lg_u32 s{sTile}, 15")
    e(f"s_cselect_b32 s{sT3}, {f2u(1.0/256)}, s{sT3}")
    e(f"s_cselect_b32 s{sO2}, {f2u(1.0/244)}, s{sO2}")
    e(f"s_cmp_eq_u32 s{sRho}, 0")
    e(f"s_cselect_b32 s{sT1}, s{sT1}, s{sT2}")
    e(f"s_cselect_b32 s{sRn}, s{sT3}, s{sO2}")
    for q in range(8):
        m = sMask + 2*q
        e(f"s_cmp_gt_u32 s{sT1}, {q}")
        e(f"s_cselect_b32 s{m}, -1, 0x7fff7fff")
        e(f"s_mov_b32 s{m+1}, s{m}")
    e(f"s_cmp_gt_u32 s{sT1}, 3")
    e(f"s_cselect_b32 s{sMask+16}, -1, 0x7fff7fff")
    e(f"s_mov_b32 s{sMask+17}, s{sMask+16}")
    e(f"s_and_b32 s{sT2}, s{sMask+4}, 0xffff")
    e(f"s_and_b32 s{sT3}, s{sMask+16}, 0xffff0000")
    e(f"s_or_b32 s{sMask+18}, s{sT2}, s{sT3}")
    e(f"s_mov_b32 s{sMask+19}, s{sMask+18}")
    e(f"s_movk_i32 s{sO1}, 4096")
    def mE(q): return f"s[{sMask+2*q}:{sMask+2*q+1}]"
    def mO(q): return mE(8 if q == 2 else q)
    def mS(q): return mE(9 if q == 2 else q)
    if o.tch != 2: e("s_barrier")
    if o.tch:
        e(f"s_cmp_ge_u32 s{sWave}, 2")
        e("s_cbranch_scc1 L_tc3")
        e(f"s_mov_b32 s{sT0}, 32768")
        e(f"buffer_load_dword v255, v{FR+1}, {srd(sW)}, s{sT0} offen")
        e("s_branch L_tc4")
        e("L_tc3:")
        e(f"buffer_load_dword v255, v{FR}, {srd(sX)}, 0 offen offset:256{NT(o.tn2)}")
        e("L_tc4:")
        e(f"buffer_load_dword v255, v{FR}, {srd(sX)}, s{sSign} offen offset:1024{NT(o.tn2)}")
    if o.tch == 2: e("s_barrier")
    for r in range(0, 128, 2): e(f"v_mov_b64 {P(r)}, 0")
    def xread(u, par):
        return f"ds_read_b128 {F(u)}, v{vAhi if u >= 16 else vAlo} offset:{par*XBUF + (u & 15)*128}"
    def wb(t): return 2 if t == 14 else (t & 1)
    def wread(slot):
        r = Wr(wb(slot))
        return [f"ds_read_b64_tr_b16 v[{r}:{r+1}], v{vWrd} offset:{slot*4096}",
                f"ds_read_b64_tr_b16 v[{r+2}:{r+3}], v{vWrd} offset:{slot*4096+256}"]
    e("s_barrier")
    stamp(1)
    if o.stamp == 3: e("s_memtime s[100:101]")
    for x in wread(0): e(x)
    for u in range(16): e(xread(u, 0))
    def body(name, acc, short, lim, xch=None, valu=None, early=None):
        e(".p2align 4")
        e(f"L_loop{name}:")
        if o.stamp == 2:
            e(f"s_mov_b32 m0, s{sIt}")
            e("s_nop 0")
            e(f"v_writelane_b32 v252, s100, m0")
            e("s_memtime s[100:101]")
        for par in (0, 1):
            nt = 7 if (short and par == 1) else 8
            for j in range(nt):
                t = par*8 + j
                last = j == nt-1
                e(f"s_waitcnt lgkmcnt({9 if j == 0 else 0})")
                if j == 3 or last:
                    e("s_barrier")
                    if o.stamp == 3 and name == "A":
                        e(f"s_lshl_b32 m0, s{sIt}, 2")
                        e(f"s_add_u32 m0, m0, {par*2 + (1 if last else 0)}")
                        e("s_nop 0")
                        e(f"v_writelane_b32 v252, s100, m0")
                        e("s_memtime s[100:101]")
                fill = [[] for _ in range(16)]
                fill[0] += wread(((par+1)*8) & 15 if last else t+1)
                np_ = par ^ 1
                if j == 0:
                    fill[1] += [xread(16, par), xread(17, par)]; fill[2] += [xread(18, par)]
                    fill[6] += ["s_waitcnt lgkmcnt(5)"]
                elif j == 1: fill[1] += [xread(19, par), xread(20, par)]
                elif j == 2: fill[1] += [xread(21, par)] + ([xread(22, par)] if nt == 8 else [])
                elif j == 3: fill[1] += [xread(0, np_), xread(1, np_)]; fill[2] += [xread(2, np_)]
                elif not last: fill[1] += [xread(j-1, np_)]
                elif j == 7:
                    fill[1] += [xread(6, np_), xread(7, np_)]
                    fill[2] += [xread(8, np_), xread(9, np_)]
                    for u in range(10, 16): fill[u-7] += [xread(u, np_)]
                else:
                    fill[1] += [xread(5, np_), xread(6, np_)]
                    fill[2] += [xread(7, np_), xread(8, np_)]
                    for u in range(9, 16): fill[u-6] += [xread(u, np_)]
                if xch is not None and j in (1, 2, 4, 5):
                    for z in (0, 1):
                        q = 4*par + 2*((j-1) % 3) + z
                        fill[4+6*z] += [f"ds_write_b128 v{vXw}, {Q4(S2+32*xch+4*q)} offset:{(q & 3)*1024}" if j < 3 else
                                        f"ds_read_b128 {Q4(S2+32*xch+4*q)}, v{vXr} offset:{(q & 3)*1024}"]
                if early and not o.eps and t == o.ep:
                    for z, x in enumerate(early): fill[3+2*z] += [x]
                if early and o.eps and 0 <= t - o.ep < 4:
                    if t == o.ep: fill[3] += early[:2]
                    fill[8] += [early[2+t-o.ep]]
                if valu:
                    for s_ in range(1, 16):
                        if valu and not fill[s_]: fill[s_] += [valu.pop(0)]
                if last and par == 1:
                    fill[13] += [f"s_add_u32 s{sIt}, s{sIt}, 1"]
                    if lim: fill[14] += [f"s_cmp_lt_u32 s{sIt}, {lim}"]
                for s in range(16):
                    e(f"v_mfma_f32_16x16x32_bf16 {Q4(acc+4*s)}, {Wf(wb(t))}, {F(j+s)}, {Q4(acc+4*s)}")
                    for x in fill[s]: e(x)
        if lim: e(f"s_cbranch_scc1 L_loop{name}")
    body("A", S2, False, 4)
    body("B", S1, True, 8)
    for r in range(4): e(f"v_mov_b32_dpp v{vT0+r}, v{S2+r} row_shl:1 row_mask:0xf bank_mask:0xf")
    e("s_waitcnt vmcnt(0)")
    for s in range(16):
        if s == 14: e("s_nop 3")
        for h in (0, 2): e(f"v_pk_add_f32 {P(S2+4*s+h)}, {P(S2+4*s+h)}, {P(S1+4*s+h)}")
        if s < 15:
            for h in (0, 2): e(f"v_pk_add_f32 {P(S1+4*s+h)}, {P(S1+4*s+h)}, {P(S2+4*s+4+h)}")
        else:
            for r in range(4): e(f"v_add_f32 v{S1+60+r}, v{S1+60+r}, v{vT0+r}")
    e("s_nop 1")
    e(f"s_cmp_lg_u32 s{sRho}, 0")
    e("s_cbranch_scc1 L_loopQ0b")
    body("Q0a", S1, False, 0, xch=1)
    e("s_branch L_loopQ1")
    body("Q0b", S1, False, 0, xch=0)
    PV, A1, A2 = S2+32, S2+36, S2+40
    va = [f"v_add_f32 v{S2+k}, v{S2+k}, v{S2+32+k}" for k in range(32)]
    va += [f"v_mov_b32_dpp v{PV+r}, v{S2+r} row_newbcast:0 row_mask:0xf bank_mask:0xf" for r in range(4)]
    for q in range(8):
        K = S2 + 4*q
        va += [f"v_sub_f32 v{K+r}, v{K+r}, v{PV+r}" for r in range(4)]
        va += [f"v_cndmask_b32 v{K+r}, 0, v{K+r}, {mE(q)}" for r in range(4)]
        if q == 0: va += [f"v_mul_f32 v{A2+r}, v{K+r}, v{K+r}" for r in range(4)]
        else:
            va += [f"v_add_f32 v{A1+r}, v{K+r}, v{(S2 if q == 1 else A1)+r}" for r in range(4)]
            va += [f"v_fmac_f32 v{A2+r}, v{K+r}, v{K+r}" for r in range(4)]
    vNA, vNB = S2+60, S2+61
    RA = S2+44
    def recl(so):
        return [f"buffer_load_dwordx4 {Q4(RA+r)}, v{vT2}, {srd(sWS)}, s{so} offen offset:{off} sc1" for r, off in ((0, 0), (8, 2048), (4, 16), (12, 2064))]
    va += [f"v_cmp_eq_u32 vcc, 15, v{vI}", f"v_mov_b32 v{vNA}, {f2u(256.0)}", f"v_mov_b32 v{vNB}, {f2u(244.0)}",
           f"v_mov_b32 v{vT0}, {f2u(245.0)}", f"v_mov_b32 v{vT3}, {f2u(240.0)}",
           f"v_cndmask_b32 v{vNA}, v{vNA}, v{vT0}, vcc", f"v_cndmask_b32 v{vNB}, v{vNB}, v{vT3}, vcc",
           f"v_lshlrev_b32 v{vT0}, 5, v{vG}",
           f"v_lshl_add_u32 v{vT1}, v{vI}, 4, v{vT0}",
           f"v_lshl_add_u32 v{vT2}, v{vI}, 7, v{vT0}",
           f"v_cmp_eq_u32 vcc, 0, v{vI}",
           f"s_lshl_b32 s{sT1}, s{sRho}, 4", f"s_add_u32 s{sT1}, s{sT1}, s{sTile}",
           f"s_lshl_b32 s{sT1}, s{sT1}, 7", f"s_add_u32 s{sT1}, s{sT1}, s{sRec}",
           f"s_mov_b32 s{sO2}, {f2u(1.0/L)}", f"v_mov_b32 v{vT3}, {f2u(1e-5)}", f"s_mov_b32 s{sT3}, 0"]
    body("Q1", S1, False, 0, valu=va)
    assert not va
    body("Q", S1, False, 12, early=[f"s_cmp_eq_u32 s{sIt}, 11", f"s_cselect_b32 s{sO3}, s{sRec}, 0x7f000000"] + recl(sO3))
    stamp(2)
    T = FR
    e(f"s_cmp_lg_u32 s{sRho}, 0")
    e("s_cbranch_scc1 L_x1")
    def xodd(snd, own):
        for q in range(8): e(f"ds_write_b128 v{vEw}, {Q4(snd+4*q)} offset:{q*1024}")
        for q in range(8):
            for h in (0, 2): e(f"v_pk_add_f32 {P(own+4*q+h)}, {P(own+4*q+h)}, {P(PV+h)}")
        e("s_waitcnt lgkmcnt(0)")
        e("s_barrier")
        for q in range(8): e(f"ds_read_b128 {Q4(T+4*q)}, v{vEr} offset:{q*1024}")
        for q in range(8):
            e(f"s_mov_b64 exec, {mO(q)}")
            e(f"s_waitcnt lgkmcnt({7-q})")
            for h in (0, 2): e(f"v_pk_add_f32 {P(S1+4*q+h)}, {P(own+4*q+h)}, {P(T+4*q+h)}")
            for h in (0, 2): e(f"v_pk_add_f32 {P(A1+h)}, {P(A1+h)}, {P(S1+4*q+h)} neg_lo:[0,1] neg_hi:[0,1]")
            for h in (0, 2): e(f"v_pk_fma_f32 {P(A2+h)}, {P(S1+4*q+h)}, {P(S1+4*q+h)}, {P(A2+h)}")
        e("s_mov_b64 exec, -1")
    xodd(S1+32, S1)
    e("s_branch L_x2")
    e("L_x1:")
    xodd(S1, S1+32)
    e("L_x2:")
    def dppred(base, n=4, nop=1):
        if nop: e("s_nop 1")
        for sh in (8, 4, 2, 1):
            for r in range(n):
                e(f"v_add_f32_dpp v{base+r}, v{base+r}, v{base+r} row_ror:{sh} row_mask:0xf bank_mask:0xf")
    dppred(A1, 8)
    ML, PUB = T, T+4
    for r in range(4): e(f"v_mul_f32 v{ML+r}, s{sRn}, v{A1+r}")
    for r in range(4): e(f"v_fma_f32 v{A2+r}, -v{A1+r}, v{ML+r}, v{A2+r}")
    for r in range(4): e(f"v_add_f32 v{ML+r}, v{ML+r}, v{PV+r}")
    for r in range(4): e(f"v_cndmask_b32 v{PUB+r}, v{A2+r}, v{ML+r}, vcc")
    e("s_mov_b32 exec_lo, 0x00030003")
    e("s_mov_b32 exec_hi, 0x00030003")
    e(f"buffer_store_dwordx4 {Q4(PUB)}, v{vT1}, {srd(sWS)}, s{sT1} offen sc1")
    e("s_mov_b64 exec, -1")
    stamp(3)
    def recloads():
        for x in recl(sRec): e(x)
    MX = T+8
    def setup():
        for src, dst in ((PB, UB), (PG, UG), (PE, UE)):
            for h in range(2):
                e(f"v_lshlrev_b32 v{dst+2*h}, 16, v{src+h}")
                e(f"v_and_b32 v{dst+2*h+1}, 0xffff0000, v{src+h}")
        for h in range(2):
            e(f"v_mov_b32 v{C1+h}, {f2u(c1)}")
            e(f"v_mov_b32 v{C2+h}, {f2u(c2)}")
        for r in range(4): e(f"v_add_f32 v{PV+r}, v{PV+r}, v{UB+r}")
    UB, UG, UE, C1, C2 = T+32, T+36, T+40, T+44, T+46
    c1 = -2.0*1.4426950408889634*0.7978845608028654
    c2 = c1*0.044715
    mA, mB = sMask+20, sMask+22
    def check(lab):
        for z, m_ in ((0, mA), (8, mB)):
            e(f"v_max3_u32 v{MX+z//4}, v{RA+z}, v{RA+z+1}, v{RA+z+2}")
            e(f"v_max3_u32 v{MX+z//4+1}, v{RA+z+3}, v{RA+z+4}, v{RA+z+5}")
        for z, m_ in ((0, mA), (8, mB)): e(f"v_max3_u32 v{MX+z//4}, v{MX+z//4}, v{RA+z+6}, v{RA+z+7}")
        for z, m_ in ((0, mA), (8, mB)): e(f"v_max_u32 v{MX+z//4}, v{MX+z//4}, v{MX+z//4+1}")
        for z, m_ in ((0, mA), (8, mB)): e(f"v_cmp_eq_u32 s[{m_}:{m_+1}], -1, v{MX+z//4}")
        e(f"s_add_u32 s{sT3}, s{sT3}, 1")
        e(f"s_or_b64 vcc, s[{mA}:{mA+1}], s[{mB}:{mB+1}]")
        e(f"s_cbranch_scc0 {lab}")
    def reload(tag):
        rl = recl(sRec)
        for z, m_ in ((0, mA), (1, mB)):
            e(f"s_mov_b64 exec, s[{m_}:{m_+1}]")
            e(f"s_cbranch_execz L_pr{tag}{z}")
            e(rl[z]); e(rl[z+2])
            e(f"L_pr{tag}{z}:")
        e("s_mov_b64 exec, -1")
    e("s_waitcnt vmcnt(1)")
    check("L_poll0")
    reload(0)
    e("L_poll0:")
    setup()
    e("s_cbranch_vccz L_pollx")
    e("L_poll:")
    e("s_waitcnt vmcnt(0)")
    check("L_pollx")
    if o.slp: e(f"s_sleep {o.slp}")
    reload(1)
    e(f"s_cmp_lt_u32 s{sT3}, 0x20000")
    e("s_cbranch_scc1 L_poll")
    e("s_waitcnt vmcnt(0)")
    e("L_pollx:")
    MU, VAR, DA, DB, CC = T+8, T+12, T+16, T+20, T+24
    for r in range(4): e(f"v_mov_b32_dpp v{CC+r}, v{RA+r} row_newbcast:0 row_mask:0xf bank_mask:0xf")
    for r in range(4): e(f"v_sub_f32 v{DA+r}, v{RA+r}, v{CC+r}")
    for r in range(4): e(f"v_sub_f32 v{DB+r}, v{RA+8+r}, v{CC+r}")
    for r in range(4): e(f"v_mul_f32 v{RA+r}, v{DA+r}, v{vNA}")
    for r in range(4): e(f"v_mul_f32 v{RA+8+r}, v{DB+r}, v{vNB}")
    for r in range(4): e(f"v_add_f32 v{VAR+r}, v{RA+4+r}, v{RA+12+r}")
    for r in range(4): e(f"v_add_f32 v{MU+r}, v{RA+r}, v{RA+8+r}")
    for r in range(4): e(f"v_fmac_f32 v{VAR+r}, v{DA+r}, v{RA+r}")
    for r in range(4): e(f"v_fmac_f32 v{VAR+r}, v{DB+r}, v{RA+8+r}")
    for r in range(4): e(f"v_add_f32 v{CC+r}, v{CC+r}, v{UB+r}")
    dppred(MU, 8, 0)
    for r in range(4): e(f"v_mul_f32 v{MU+r}, s{sO2}, v{MU+r}")
    for r in range(4): e(f"v_fma_f32 v{VAR+r}, v{VAR+r}, s{sO2}, v{vT3}")
    for r in range(4): e(f"v_fma_f32 v{VAR+r}, -v{MU+r}, v{MU+r}, v{VAR+r}")
    for r in range(4): e(f"v_add_f32 v{MU+r}, v{MU+r}, v{CC+r}")
    for r in range(4): e(f"v_rsq_f32 v{VAR+r}, v{VAR+r}")
    SC, SH = T+24, T+28
    for r in range(4): e(f"v_sub_f32 v{MU+r}, v{PV+r}, v{MU+r}")
    for r in range(4): e(f"v_mul_f32 v{SC+r}, v{VAR+r}, v{UG+r}")
    for r in range(4): e(f"v_fma_f32 v{SH+r}, v{MU+r}, v{SC+r}, v{UE+r}")
    stamp(4)
    oflags = (" sc1" if o.osc1 else "") + (" nt" if o.ont else "")
    pend = None
    for q in range(8):
        zb = T + 48 + 8*(q & 1)
        ob = T + 64 + 4*(q & 3)
        U = ((S2+4*q, zb, ""), (S1+4*q, zb+4, " neg_lo:[1,0,0] neg_hi:[1,0,0]"))
        for y, z, ng in U:
            for h in (0, 2): e(f"v_pk_fma_f32 {P(y+h)}, {P(y+h)}, {P(SC+h)}, {P(SH+h)}{ng}")
        if pend:
            for x in pend: e(x)
        for y, z, ng in U:
            for h in (0, 2): e(f"v_pk_mul_f32 {P(z+h)}, {P(y+h)}, {P(y+h)}")
        for y, z, ng in U:
            for h in (0, 2): e(f"v_pk_fma_f32 {P(z+h)}, {P(z+h)}, {P(C2)}, {P(C1)}")
        for y, z, ng in U:
            for h in (0, 2): e(f"v_pk_mul_f32 {P(z+h)}, {P(z+h)}, {P(y+h)}")
        for r in range(8): e(f"v_exp_f32 v{zb+r}, v{zb+r}")
        for r in range(0, 8, 2): e(f"v_pk_add_f32 {P(zb+r)}, {P(zb+r)}, 1.0 op_sel_hi:[1,0]")
        for r in range(8): e(f"v_rcp_f32 v{zb+r}, v{zb+r}")
        for y, z, ng in U:
            for h in (0, 2): e(f"v_pk_mul_f32 {P(z+h)}, {P(z+h)}, {P(y+h)}")
        for r in range(4): e(f"v_cvt_pk_bf16_f32 v{ob+r}, v{zb+2*r}, v{zb+2*r+1}")
        so = "0" if q < 4 else f"s{sO1}"
        pend = [f"v_permlane16_swap_b32 v{ob}, v{ob+2}", f"v_permlane16_swap_b32 v{ob+1}, v{ob+3}",
                f"s_mov_b64 exec, {mS(q)}",
                f"buffer_store_dwordx4 {Q4(ob)}, v{vOut}, {srd(sO)}, {so} offen offset:{(q & 3)*1024}{oflags}",
                "s_mov_b64 exec, -1"]
    e("s_nop 1")
    for x in pend: e(x)
    if o.wb:
        if o.wb == 1:
            e(f"s_cmp_lg_u32 s{sWave}, 0")
            e("s_cbranch_scc1 L_end")
        e("s_waitcnt vmcnt(0)")
        e("buffer_wbl2 sc1")
    if o.stamp:
        e("s_waitcnt vmcnt(0)")
        e(f"{'s_memrealtime' if o.rt else 's_memtime'} s[{sT1}:{sT1+1}]")
        e(f"s_memrealtime s[{sMask}:{sMask+1}]")
        e("s_mov_b64 exec, 1")
        e(f"s_lshl_b32 s{sT0}, s2, 2")
        e(f"s_add_u32 s{sT0}, s{sT0}, s{sWave}")
        e(f"s_lshl_b32 s{sT0}, s{sT0}, 6")
        e(f"s_add_u32 s{sT0}, s{sT0}, 0x40000")
        e("s_waitcnt lgkmcnt(0)")
        e("v_mov_b32 v0, 0")
        lst = [sTS+2, sTS+4, sTS+6, sTS+8, sT1]
        for k, r in enumerate(lst):
            e(f"s_sub_u32 s{sRn}, s{r}, s{sTS}")
            e(f"v_mov_b32 v1, s{sRn}")
            e(f"buffer_store_dword v1, v0, {srd(sWS)}, s{sT0} offen offset:{4*k}")
        e(f"s_sub_u32 s{sRn}, s{sMask}, s{sTS+10}")
        e(f"v_mov_b32 v1, s{sRn}")
        e(f"buffer_store_dword v1, v0, {srd(sWS)}, s{sT0} offen offset:20")
        e(f"v_mov_b32 v1, s{sTS+10}")
        e(f"buffer_store_dword v1, v0, {srd(sWS)}, s{sT0} offen offset:24")
        e(f"v_mov_b32 v1, s{sT3}")
        e(f"buffer_store_dword v1, v0, {srd(sWS)}, s{sT0} offen offset:28")
        if o.stamp >= 2:
            if o.stamp == 2: e("v_writelane_b32 v252, s100, 12")
            e("s_mov_b64 exec, 0xffff")
            e(f"v_subrev_u32 v252, s{sTS}, v252")
            e(f"v_lshlrev_b32 v0, 2, v{vLane}")
            e(f"s_add_u32 s{sT0}, s{sT0}, 0x10000")
            e(f"buffer_store_dword v252, v0, {srd(sWS)}, s{sT0} offen")
    e("L_end:")
    e("s_endpgm")
    e('.section .rodata,"a"')
    e(".p2align 6")
    e(f".amdhsa_kernel {o.name}_kernel")
    e(f"  .amdhsa_next_free_vgpr {NV}")
    e("  .amdhsa_next_free_sgpr 102")
    e(f"  .amdhsa_accum_offset {NV}")
    e("  .amdhsa_group_segment_fixed_size 0")
    e("  .amdhsa_kernarg_size 64")
    e("  .amdhsa_user_sgpr_count 2")
    e("  .amdhsa_user_sgpr_kernarg_segment_ptr 1")
    e("  .amdhsa_system_sgpr_workgroup_id_x 1")
    e(".end_amdhsa_kernel")
    return "\n".join(x for x in out if x is not None) + "\n"

if __name__ == "__main__":
    o = Opt()
    path = sys.argv[1]
    for a in sys.argv[2:]:
        k, v = a.split("=")
        assert hasattr(o, k), k
        setattr(o, k, int(v))
    open(path, "w").write(gen(o))
```
